```python
import torch

def _softmax(x, axis=-1):
    return torch.softmax(x, dim=axis)
def _gelu(x):
    return torch.nn.functional.gelu(x, approximate="tanh")
def _silu(x):
    return torch.nn.functional.silu(x)
def _sigmoid(x):
    return torch.sigmoid(x)
def _layernorm(x, axis=-1, eps=1e-5):
    m = x.mean(dim=axis, keepdim=True)
    v = x.var(dim=axis, keepdim=True, unbiased=False)
    return (x - m) / torch.sqrt(v + eps)
def _scatter_add(tgt, idx, src, axis=0):
    return tgt.clone().index_add_(axis, idx, src)
def _segment_sum(src, seg, n):
    out = torch.zeros((n,) + src.shape[1:], dtype=src.dtype)
    return out.index_add_(0, seg, src)
def _pad(x, pw):
    flat = tuple(v for pair in reversed(pw) for v in pair)
    return torch.nn.functional.pad(x, flat)

kernel_name = 'standalone__mha_softmax__near_ridge'

def setup_inputs():

    _w = (lambda a: (lambda t: t.to(torch.bfloat16) if t.is_floating_point() else t)(torch.as_tensor(a)))
    B, H, Sq, Sk, D = 8, 16, 368, 512, 256
    return {
        "q": _w((lambda *s: torch.randn(*s, dtype=torch.bfloat16) * 0.8)(B, H, Sq, D)),
        "k": _w((lambda *s: torch.randn(*s, dtype=torch.bfloat16) * 0.8)(B, H, Sk, D)),
        "v": _w((lambda *s: torch.randn(*s, dtype=torch.bfloat16) * 0.05)(B, H, Sk, D)),
    }

def reference(q, k, v):
    scale = q.shape[-1] ** -0.5
    scores = torch.einsum("bhqd,bhkd->bhqk", q, k) * scale
    p = _softmax(scores, axis=-1)
    return torch.einsum("bhqk,bhkd->bhqd", p, v)
```

```python
import sys, re, struct, argparse

KN = "standalone__mha_softmax__near_ridge_kernel"
BIAS = 4096
QHEAD = 368 * 512
KHEAD = 512 * 512

def f2u(x): return struct.unpack("<I", struct.pack("<f", x))[0]

SQ, SK, SV, SO = 4, 8, 12, 16
SOFF = 20
sCNT, sCUR, sDELTA, sDMAK, sDMAV = 28, 29, 30, 31, 32
sC, sTE, sTO, sFLA, sFLB = 33, 34, 35, 36, 37
sW, sWK, sWV, sNREC = 38, 39, 40, 41
sPOS, sNEG, sT = 42, 43, 44
sTMP = 45
sPTR = 48
sRET = 60
sP, sTY, sROW0 = 62, 63, 64
SD = 68
sST = 72

QA, QB = 0, 64
SA2, SB, S1 = 128, 144, 160
FR = 176
vKA = 208
vVA = 212
vKD, vVD = 214, 215
vNMA, vNMB, vLA, vLB = 216, 217, 218, 219
vMXA, vMXB, vMX = 220, 221, 222
vT = 224
vLANE = 240
OA, OB = 0, 128

def vr(b, n): return f"v[{b}:{b+n-1}]"
def ar(b, n): return f"a[{b}:{b+n-1}]"
def sr(b, n): return f"s[{b}:{b+n-1}]"
def frag(n): return FR + 4 * (n % 8)

class Cfg:
    stamps = False
    T = 8.0
    waitlag = 3
    LA_E = 3
    LA_O = 4
    preE = 0
    preO = 8
    q_nt = False
    kv_nt = False
    o_nt = False

cfg = Cfg()
out = []
def e(s):
    for l in s.split("\n"):
        l = l.strip()
        if l: out.append(l)

nstamp = [0]
def stamp():
    if cfg.stamps:
        e(f"s_memtime {sr(sST + 2 * nstamp[0], 2)}")
        nstamp[0] += 1

def mfma_qk(S, Q, ks, n):
    c = "0" if ks == 0 else vr(S, 16)
    return f"v_mfma_f32_32x32x16_bf16 {vr(S,16)}, {vr(frag(n),4)}, {vr(Q+4*ks,4)}, {c}"
def mfma_pv(O, S, m, db, n):
    return f"v_mfma_f32_32x32x16_bf16 {ar(O+16*db,16)}, {vr(frag(n),4)}, {vr(S+8*m,4)}, {ar(O+16*db,16)}"
def rd_k(ks, n):
    return [f"ds_read_b128 {vr(frag(n),4)}, v{vKA+(ks&3)} offset:{(ks>>2)*1024}"]
def rd_v(i, n):
    m, db = i >> 3, i & 7
    return [f"ds_read_b64_tr_b16 {vr(frag(n)+2*g,2)}, v{vVA+(db&1)} offset:{(g*8+m*4+(db>>1))*1024}" for g in (0, 1)]
def dma8(srd, va, base, nt=False, add=0):
    r = []
    for g in (0, 1):
        off = add + 4096 * g
        r.append(f"s_add_u32 m0, s{base}, {off}" if off else f"s_mov_b32 m0, s{base}")
        for lc in range(4):
            r.append(f"buffer_load_dwordx4 v{va}, {sr(srd,4)}, s{SOFF+4*g+lc} offen offset:{1024*lc}{' nt' if nt else ''} lds")
    return r
def emit_dma8(srd, va, base, nt=False, add=0):
    for x in dma8(srd, va, base, nt, add):
        e(x)
        if "m0" in x: e("s_nop 0")

def max_chain(S, dst):
    r = [f"v_max3_f32 v{dst}, v{S}, v{S+1}, v{S+2}"]
    for i in range(3, 15, 2): r.append(f"v_max3_f32 v{dst}, v{dst}, v{S+i}, v{S+i+1}")
    r.append(f"v_max_f32_e32 v{dst}, v{dst}, v{S+15}")
    return r
def fma1(S, i, nm): return f"v_fma_f32 v{S+i}, v{S+i}, s{sC}, v{nm}"
def ilv(*ls):
    r = []
    for t in range(max(map(len, ls))):
        for l in ls:
            if t < len(l): r.append(l[t])
    return r
def pre_check_single():
    return max_chain(S1, vMXA) + [f"v_fma_f32 v{vMXA}, v{vMXA}, s{sC}, v{vNMA}"] + \
        [fma1(S1, i, vNMA) for i in range(cfg.preE)] + [f"v_cmp_lt_f32_e32 vcc, s{sTE}, v{vMXA}"]
def pre_check_double():
    return ilv(max_chain(SA2, vMXA), max_chain(SB, vMXB)) + \
        [f"v_fma_f32 v{vMXA}, v{vMXA}, s{sC}, v{vNMA}", f"v_fma_f32 v{vMXB}, v{vMXB}, s{sC}, v{vNMB}"] + \
        ilv([fma1(SA2, i, vNMA) for i in range(cfg.preO)], [fma1(SB, i, vNMB) for i in range(cfg.preO)]) + \
        [f"v_max_f32_e32 v{vMX}, v{vMXA}, v{vMXB}", f"v_cmp_lt_f32_e32 vcc, s{sTO}, v{vMX}"]
def soft_half(S, m, nm, l, pre):
    b = 8 * m
    r = []
    for t in range(-1, 10):
        i = b + t + 1
        if 0 <= t + 1 < 8 and i >= pre: r.append(fma1(S, i, nm))
        if 0 <= t < 8: r.append(f"v_exp_f32_e32 v{S+b+t}, v{S+b+t}")
        if 0 <= t - 1 < 8: r.append(f"v_add_f32_e32 v{l}, v{l}, v{S+b+t-1}")
        if t - 1 >= 1 and (t - 1) % 2 == 1 and t - 1 < 8:
            j = (t - 1) // 2
            r.append(f"v_cvt_pk_bf16_f32 v{S+b+j}, v{S+b+2*j}, v{S+b+2*j+1}")
    return r

def cost(s): return 2 if s.startswith("v_exp") else 1

class Sched:
    def __init__(self, mf, pending):
        self.mf = mf
        self.rd = {}
        self.fill = {}
        self.head = {}
        self.pending = pending
    def reads(self, items):
        for g, n, t in items: self.rd.setdefault(g, []).append((n, t))
    def put(self, g, t): self.fill.setdefault(g, []).append(t)
    def puthead(self, g, t): self.head.setdefault(g, []).append(t)
    def load(self, g):
        return len(self.rd.get(g, [])) + sum(map(cost, self.fill.get(g, []))) + len(self.head.get(g, [])) + self.waits.get(g, 0)
    def plan_waits(self):
        q = list(self.pending)
        q = [(n, -1 - a) for n, a in q]
        done = 0
        w = {}
        for i, (t, n) in enumerate(self.mf):
            for (fn, _) in self.rd.get(i - 1, []): q.append((fn, i - 1))
            if n is None: continue
            last = max(k for k, (fn, _) in enumerate(q) if fn == n) + 1
            if last > done:
                k = last
                while k < len(q) and q[k][1] <= i - 1 - cfg.waitlag: k += 1
                N = min(15, len(q) - k)
                done = len(q) - N
                w[i] = N
        self.waitN = w
        self.waits = {i - 1: 1 for i in w}
    def spread(self, items, g0, g1, cap=6):
        tot = sum(map(cost, items)) + sum(self.load(g) for g in range(g0, g1 + 1))
        lvl = tot / (g1 - g0 + 1)
        g = g0; acc = 0.0; used = 0
        base = {x: self.load(x) for x in range(g0, g1 + 1)}
        cum_target = 0.0; cum = 0
        it = list(items)
        for g in range(g0, g1 + 1):
            cum_target += lvl; cum += base[g]
            while it and (cum + cost(it[0]) / 2 <= cum_target + 1e-9 or g == g1):
                x = it.pop(0); self.put(g, x); cum += cost(x)
    def emit(self, name):
        loads = []
        def gap(g):
            for t in self.head.get(g, []): e(t)
            for _, t in self.rd.get(g, []): e(t)
            for t in self.fill.get(g, []): e(t)
        gap(-1)
        for i, (t, n) in enumerate(self.mf):
            if i in self.waitN: e(f"s_waitcnt lgkmcnt({self.waitN[i]})")
            e(t)
            gap(i)
            loads.append(self.load(i))
        print(f"{name}: gap loads {' '.join(map(str, loads))}  total {sum(loads)} pre {self.load(-1)}", file=sys.stderr)

def adv_salu(kind):
    r = [f"s_add_u32 s{sDMAV}, s{sCUR}, s{sWV}" if kind == "E" else f"s_add_u32 s{sDMAK}, s{sCUR}, s{sWK}"]
    r += [f"s_add_u32 s{sCUR}, s{sCUR}, s{sPOS}",
          f"s_cmp_eq_u32 s{sCUR}, 0x28000\ns_cselect_b32 s{sDELTA}, s{sNEG}, s{sPOS}\ns_cselect_b32 s{sCUR}, 0, s{sCUR}"]
    return r
def k_adv(): return [f"v_add_u32_e32 v{vKA+i}, s{sDELTA}, v{vKA+i}" for i in range(4)]
def v_adv(): return [f"v_add_u32_e32 v{vVA+i}, s{sDELTA}, v{vVA+i}" for i in range(2)]
def dma_stream():
    r = [f"s_cmp_ge_u32 s{sCNT}, 2\ns_cselect_b32 s{SV+2}, s{sNREC}, 0",
         f"s_cmp_ge_u32 s{sCNT}, 4\ns_cselect_b32 s{SK+2}, s{sNREC}, 0"]
    r += dma8(SV, vVD, sDMAV, cfg.kv_nt) + [f"v_add_u32_e32 v{vVD}, 0x8000, v{vVD}"]
    r += dma8(SK, vKD, sDMAK, cfg.kv_nt) + [f"v_add_u32_e32 v{vKD}, 0x8000, v{vKD}"]
    return r

_oldcost = cost
def cost(s): return sum(2 if x.startswith("v_exp") else 1 for x in s.split("\n"))

def place_dma(S, g0, step=2):
    g = g0
    for x in dma_stream():
        if x.startswith("buffer_load"):
            S.put(g, x); g += step
        elif "m0" in x: S.put(g - 1, x)
        elif x.startswith("s_cmp"): S.put(g0 - 1, x)
        else: S.put(g - step, x)
    return g

def hsE():
    mf = []
    for ks in range(16):
        mf.append((mfma_qk(SA2, QA, ks, ks), ks)); mf.append((mfma_qk(SB, QB, ks, ks), None))
    for i in range(16): mf.append((mfma_pv(OA, S1, i >> 3, i & 7, 16 + i), 16 + i))
    S = Sched(mf, [(n, cfg.LA_E - n + 1) for n in range(cfg.LA_E)])
    rd = []
    g = 0
    for n in range(cfg.LA_E, 16):
        g = max(g, 2 * n - 15); rd.append((g, n, rd_k(n, n)[0])); g += 1
    for i in range(8):
        a, b = rd_v(i, 16 + i); rd.append((17 + 2 * i, 16 + i, a)); rd.append((18 + 2 * i, 16 + i, b))
    k = 0
    for i in range(8, 16):
        for x in rd_v(i, 16 + i):
            rd.append((33 + (k * 10) // 16, 16 + i, x)); k += 1
    for n in range(cfg.LA_O): rd.append((47 - cfg.LA_O + n, 32 + n, rd_k(n, 32 + n)[0]))
    S.reads(rd); S.plan_waits()
    S.puthead(0, "s_cbranch_vccnz L_slowE\nL_retE:")
    S.puthead(47 - cfg.LA_O, "s_waitcnt vmcnt(24)"); S.puthead(47 - cfg.LA_O, "s_barrier")
    for x in v_adv(): S.put(0, x)
    place_dma(S, 2, 2) if False else place_dma_e(S)
    S.spread(soft_half(S1, 0, vNMA, vLA, cfg.preE) + soft_half(S1, 1, vNMA, vLA, cfg.preE), 0, 30)
    S.put(46, f"s_sub_u32 s{sCNT}, s{sCNT}, 1")
    S.spread(pre_check_double(), 34, 47)
    S.put(47, "s_cbranch_scc1 L_tail1")
    S.emit("hsE")
def place_dma_e(S):
    g = place_dma(S, 1, 2) if False else None
    st = dma_stream()
    S.put(0, st[0]); S.put(1, st[1])
    g = 2
    for x in st[2:]:
        if x.startswith("buffer_load"): S.put(g, x); g += 2
        elif "m0" in x: S.put(g - 1, x)
        else: S.put(g - 1, x)
    a = adv_salu("E")
    S.put(19, a[0]); S.put(21, a[1]); S.put(23, a[2])
    for i, x in enumerate(k_adv()): S.put(27 + 2 * (i // 2) + 0, x)

def hsO():
    mf = []
    for ks in range(16): mf.append((mfma_qk(S1, QA, ks, ks), ks))
    for i in range(16):
        mf.append((mfma_pv(OA, SA2, i >> 3, i & 7, 16 + i), 16 + i)); mf.append((mfma_pv(OB, SB, i >> 3, i & 7, 16 + i), None))
    S = Sched(mf, [(n, cfg.LA_O - n) for n in range(cfg.LA_O)])
    rd = []
    for n in range(cfg.LA_O, 16): rd.append((max(0, n - cfg.LA_O - 1), n, rd_k(n, n)[0]))
    for i in range(16):
        a, b = rd_v(i, 16 + i); rd.append((11 + 2 * i, 16 + i, a)); rd.append((12 + 2 * i, 16 + i, b))
    for n in range(cfg.LA_E): rd.append((46 - cfg.LA_E + n, 32 + n, rd_k(n, 32 + n)[0]))
    S.reads(rd); S.plan_waits()
    S.puthead(0, "s_cbranch_vccnz L_slowO\nL_retO:")
    S.puthead(46 - cfg.LA_E, "s_waitcnt vmcnt(16)"); S.puthead(46 - cfg.LA_E, "s_barrier")
    for i, x in enumerate(v_adv()): S.put(8 + i, x)
    S.spread(ilv(soft_half(SA2, 0, vNMA, vLA, cfg.preO), soft_half(SB, 0, vNMB, vLB, cfg.preO)), 0, 14)
    S.spread(ilv(soft_half(SA2, 1, vNMA, vLA, cfg.preO), soft_half(SB, 1, vNMB, vLB, cfg.preO)), 15, 30)
    a = adv_salu("O")
    S.put(32, a[0]); S.put(33, a[1]); S.put(34, a[2])
    for i, x in enumerate(k_adv()): S.put(36 + i, x)
    S.put(46, f"s_sub_u32 s{sCNT}, s{sCNT}, 1")
    S.spread(pre_check_single(), 32, 47)
    S.put(47, "s_cbranch_scc0 L_hsE")
    S.emit("hsO")

def first_hs(ty):
    mf = []
    for ks in range(16):
        if ty == 0:
            mf.append((mfma_qk(SA2, QA, ks, ks), ks)); mf.append((mfma_qk(SB, QB, ks, ks), None))
        else: mf.append((mfma_qk(S1, QA, ks, ks), ks))
    S = Sched(mf, [])
    st = 2 if ty == 0 else 1
    rd = [(-1, n, rd_k(n, n)[0]) for n in range(8)]
    for n in range(8, 16): rd.append((st * (n - 8) + st - 1, n, rd_k(n, n)[0]))
    S.reads(rd); S.plan_waits()
    d = dma8(SV, vVD, sDMAV, cfg.kv_nt) + [f"v_add_u32_e32 v{vVD}, 0x8000, v{vVD}"] + \
        dma8(SK, vKD, sDMAK, cfg.kv_nt) + [f"v_add_u32_e32 v{vKD}, 0x8000, v{vKD}"]
    g = 0
    for x in d:
        if x.startswith("buffer_load"): S.put(g, x); g += st
        else: S.put(g - 1, x)
    S.emit(f"first{ty}")
    if ty == 1:
        e(f"s_add_u32 s{sDMAV}, s{sWV}, {4*32768}")
    for x in adv_salu("E" if ty == 0 else "O"): e(x)
    for x in k_adv(): e(x)
    e("s_nop 7")
    e(f"s_waitcnt vmcnt({24 if ty == 0 else 16})\ns_barrier")
    for n in range(cfg.LA_O if ty == 0 else cfg.LA_E): e(rd_k(n, n)[0])
    for x in (pre_check_double() if ty == 0 else pre_check_single()): e(x)
    e(f"s_sub_u32 s{sCNT}, s{sCNT}, 1")
    e(f"s_branch {'L_hsO' if ty == 0 else 'L_hsE'}")

def slow_unit(tag, S, pre, mx, nm, l, fl, resc):
    e(f"s_cmp_lg_u32 s{fl}, 0")
    e(f"s_cbranch_scc1 L_do{tag}")
    e(f"v_cmp_lt_f32_e32 vcc, s{sT}, v{mx}")
    e(f"s_cbranch_vccz L_skip{tag}")
    e(f"L_do{tag}:")
    e(f"v_mov_b32_e32 v{vT}, v{mx}\ns_nop 1\nv_permlane32_swap_b32_e32 v{mx}, v{vT}\ns_nop 1")
    e(f"v_max3_f32 v{mx}, v{mx}, v{vT}, s{fl}")
    e(f"v_sub_f32_e32 v{nm}, v{nm}, v{mx}")
    for i in range(pre): e(f"v_sub_f32_e32 v{S+i}, v{S+i}, v{mx}")
    e(f"s_cmp_lg_u32 s{fl}, 0")
    e(f"s_mov_b32 s{fl}, 0")
    e(f"s_cbranch_scc1 L_skip{tag}")
    e(f"v_exp_f32_e64 v{vT}, -v{mx}\ns_nop 0")
    e(f"v_mul_f32_e32 v{l}, v{l}, v{vT}")
    e(f"s_call_b64 {sr(sRET,2)}, {resc}")
    e(f"L_skip{tag}:")
def slow(kind, tag, ret):
    e(f"L_slow{tag}:")
    if kind == "E":
        slow_unit(tag + "a", S1, cfg.preE, vMXA, vNMA, vLA, sFLA, "L_rescA")
        e(f"s_mov_b32 s{sTE}, s{sT}")
    else:
        slow_unit(tag + "a", SA2, cfg.preO, vMXA, vNMA, vLA, sFLA, "L_rescA")
        slow_unit(tag + "b", SB, cfg.preO, vMXB, vNMB, vLB, sFLB, "L_rescB")
        e(f"s_mov_b32 s{sTO}, s{sT}")
    e(f"s_branch {ret}")
def rescale(name, O):
    e(f"{name}:\ns_nop 15")
    for i in range(0, 128, 4):
        for j in range(4): e(f"v_accvgpr_read_b32 v{vT+1+j}, a{O+i+j}")
        for j in range(4): e(f"v_mul_f32_e32 v{vT+1+j}, v{vT+1+j}, v{vT}")
        for j in range(4): e(f"v_accvgpr_write_b32 a{O+i+j}, v{vT+1+j}")
    e(f"s_nop 1\ns_setpc_b64 {sr(sRET,2)}")

vWA = 0
vRA = 4
vGA = 5
vXW, vXR = 9, 10
vF0, vF1 = 12, 14
vE = 16
ML_OFF = 147456

def out_tile(getregs, dbs, lc0):
    nb = 0
    for k in range(0, len(dbs), 2):
        lcs = k // 2
        for db in dbs[k:k + 2]:
            w = vE + 32 * (nb % 2); nb += 1
            getregs(db, w)
            for j in range(8): e(f"v_cvt_pk_bf16_f32 v{w+16+j}, v{w+2*j}, v{w+2*j+1}")
            for g1 in (0, 1):
                e(f"ds_write_b128 v{vWA+(db&1)*2+g1}, {vr(w+16+4*g1,4)} offset:{lcs*4096}")
        r = 96 + 16 * (lcs % 2)
        e("s_waitcnt lgkmcnt(0)")
        for rb in range(4): e(f"ds_read_b128 {vr(r+4*rb,4)}, v{vRA} offset:{lcs*4096+rb*1024}")
        for rb in range(4):
            e(f"s_waitcnt lgkmcnt({3-rb})")
            e(f"buffer_store_dwordx4 {vr(r+4*rb,4)}, v{vGA+rb}, {sr(SO,4)}, 0 offen offset:{(lc0+lcs)*128}{' nt' if cfg.o_nt else ''}")

def tail(ty):
    e(f"L_tail{ty}:")
    stamp_at(2)
    e("s_waitcnt vmcnt(0)\ns_barrier")
    for x in v_adv(): e(x)
    e(f"s_cbranch_vccnz L_slowT{ty}\nL_retT{ty}:")
    mf = []
    for i in range(16):
        if ty == 0: mf.append((mfma_pv(OA, S1, i >> 3, i & 7, i), i))
        else:
            mf.append((mfma_pv(OA, SA2, i >> 3, i & 7, i), i)); mf.append((mfma_pv(OB, SB, i >> 3, i & 7, i), None))
    S = Sched(mf, [])
    st = 1 if ty == 0 else 2
    rd = []
    for i in range(16):
        for x in rd_v(i, i): rd.append((-1 if i < 7 else st * (i - 7) + st - 1, i, x))
    S.reads(rd); S.plan_waits()
    if ty == 0:
        for x in soft_half(S1, 0, vNMA, vLA, cfg.preE): S.put(-1, x)
        S.put(-1, "s_nop 0")
        S.spread(soft_half(S1, 1, vNMA, vLA, cfg.preE), 0, 6)
    else:
        for x in ilv(soft_half(SA2, 0, vNMA, vLA, cfg.preO), soft_half(SB, 0, vNMB, vLB, cfg.preO)): S.put(-1, x)
        S.put(-1, "s_nop 0")
        S.spread(ilv(soft_half(SA2, 1, vNMA, vLA, cfg.preO), soft_half(SB, 1, vNMB, vLB, cfg.preO)), 0, 14)
    S.emit(f"tail{ty}")
    stamp_at(3)
    L = vLANE
    e(f"""
    s_lshl_b32 s{sTMP}, s{sW}, 14
    s_add_u32 s{sTMP}, s{sTMP}, 0x10000
    v_and_b32_e32 v{vE}, 7, v{L}
    v_lshrrev_b32_e32 v{vE+1}, 5, v{L}
    v_xor_b32_e32 v{vE+1}, v{vE+1}, v{vE}
    v_and_b32_e32 v{vE+2}, 31, v{L}
    v_lshlrev_b32_e32 v{vE+2}, 7, v{vE+2}
    v_lshl_add_u32 v{vE+2}, v{vE+1}, 4, v{vE+2}
    v_add_u32_e32 v{vWA}, s{sTMP}, v{vE+2}
    v_xor_b32_e32 v{vWA+1}, 32, v{vWA}
    v_xor_b32_e32 v{vWA+2}, 64, v{vWA}
    v_xor_b32_e32 v{vWA+3}, 0x60, v{vWA}
    v_lshrrev_b32_e32 v{vE+1}, 3, v{L}
    v_xor_b32_e32 v{vE+2}, v{vE+1}, v{vE}
    v_lshlrev_b32_e32 v{vE+2}, 4, v{vE+2}
    v_lshl_add_u32 v{vE+2}, v{vE+1}, 7, v{vE+2}
    v_add_u32_e32 v{vRA}, s{sTMP}, v{vE+2}
    v_lshlrev_b32_e32 v{vE}, 4, v{vE}
    v_lshl_add_u32 v{vE}, v{vE+1}, 9, v{vE}
    s_lshl_b32 s{sTMP}, s{sW}, 5
    s_add_u32 s{sTMP}, s{sTMP}, s{sROW0}
    s_lshl_b32 s{sTMP}, s{sTMP}, 9
    v_add_u32_e32 v{vGA}, s{sTMP}, v{vE}
    v_add_u32_e32 v{vGA+1}, 0x1000, v{vGA}
    v_add_u32_e32 v{vGA+2}, 0x2000, v{vGA}
    v_add_u32_e32 v{vGA+3}, 0x3000, v{vGA}
    s_lshl_b32 s{sTMP}, s{sW}, 14
    s_cmp_eq_u32 s{sW}, 3
    s_cselect_b32 s{sTMP}, 0x20000, s{sTMP}
    s_xor_b32 s{sTMP+1}, s{sW}, 1
    s_lshl_b32 s{sTMP+2}, s{sTMP+1}, 14
    s_cmp_eq_u32 s{sTMP+1}, 3
    s_cselect_b32 s{sTMP+2}, 0x20000, s{sTMP+2}
    v_lshlrev_b32_e32 v{vE}, 4, v{L}
    v_add_u32_e32 v{vXW}, s{sTMP}, v{vE}
    v_add_u32_e32 v{vXR}, s{sTMP+2}, v{vE}
    """)
    for l in (vLA, vLB):
        e(f"v_mov_b32_e32 v{vT}, v{l}\ns_nop 1\nv_permlane32_swap_b32_e32 v{l}, v{vT}\ns_nop 1\nv_add_f32_e32 v{l}, v{l}, v{vT}")
    e(f"""
    s_lshl_b32 s{sTMP}, s{sW}, 9
    s_add_u32 s{sTMP}, s{sTMP}, {ML_OFF}
    v_lshlrev_b32_e32 v{vE}, 3, v{L}
    v_add_u32_e32 v{vE}, s{sTMP}, v{vE}
    v_xor_b32_e32 v11, 0x200, v{vE}
    v_mov_b32_e32 v{vE+2}, v{vNMB}
    v_mov_b32_e32 v{vE+3}, v{vLB}
    ds_write_b64 v{vE}, {vr(vE+2,2)}
    """)
    snd = OB + 64 * (1 - ty)
    for i in range(16): e(f"ds_write_b128 v{vXW}, {ar(snd+4*i,4)} offset:{1024*i}")
    e(f"v_rcp_f32_e32 v{vF0}, v{vLA}\ns_nop 0")
    def getA(db, w):
        for j in range(16): e(f"v_accvgpr_read_b32 v{w+j}, a{OA+16*db+j}")
        for j in range(0, 16, 2): e(f"v_pk_mul_f32 {vr(w+j,2)}, {vr(w+j,2)}, {vr(vF0,2)} op_sel_hi:[1,0]")
    out_tile(getA, list(range(8)), 0)
    stamp_at(4)
    e("s_waitcnt lgkmcnt(0)\ns_barrier")
    e(f"ds_read_b64 {vr(vE,2)}, v11")
    X = 128
    for i in range(16): e(f"ds_read_b128 {vr(X+4*i,4)}, v{vXR} offset:{1024*i}")
    e(f"""
    s_lshl_b32 s{sTMP}, s{sP}, 5
    s_lshl_b32 s{sTMP+1}, s{sW}, 5
    s_sub_u32 s{sTMP}, s{sTMP}, s{sTMP+1}
    s_add_u32 s{sTMP}, s{sTMP}, 128
    s_lshl_b32 s{sTMP}, s{sTMP}, 9
    """)
    for rb in range(4): e(f"v_add_u32_e32 v{vGA+rb}, s{sTMP}, v{vGA+rb}")
    e(f"""
    s_waitcnt lgkmcnt(15)
    v_min_f32_e32 v{vE+2}, v{vE}, v{vNMB}
    v_sub_f32_e32 v{vF0}, v{vE+2}, v{vNMB}
    v_sub_f32_e32 v{vF1}, v{vE+2}, v{vE}
    v_exp_f32_e32 v{vF0}, v{vF0}
    v_exp_f32_e32 v{vF1}, v{vF1}
    s_nop 0
    v_mul_f32_e32 v{vE+2}, v{vF0}, v{vLB}
    v_fmac_f32_e32 v{vE+2}, v{vF1}, v{vE+1}
    v_rcp_f32_e32 v{vE+2}, v{vE+2}
    s_nop 0
    v_mul_f32_e32 v{vF0}, v{vF0}, v{vE+2}
    v_mul_f32_e32 v{vF1}, v{vF1}, v{vE+2}
    s_waitcnt lgkmcnt(0)
    """)
    def getB(db, w):
        x = X + 16 * (db - 4 * ty)
        for j in range(16): e(f"v_accvgpr_read_b32 v{w+j}, a{OB+16*db+j}")
        for j in range(0, 16, 2): e(f"v_pk_mul_f32 {vr(w+j,2)}, {vr(w+j,2)}, {vr(vF0,2)} op_sel_hi:[1,0]")
        for j in range(0, 16, 2): e(f"v_pk_fma_f32 {vr(w+j,2)}, {vr(x+j,2)}, {vr(vF1,2)}, {vr(w+j,2)} op_sel_hi:[1,0,1]")
    out_tile(getB, list(range(4 * ty, 4 * ty + 4)), 2 * ty)
    stamp_at(5)
    if cfg.stamps:
        e("s_waitcnt vmcnt(0)")
        stamp_at(6)
        e(f"s_memrealtime {sr(sST+14,2)}")
        e("s_branch L_dump")
    else:
        e("s_endpgm")

def stamp_at(i):
    if cfg.stamps: e(f"s_memtime {sr(sST+2*i,2)}\ns_waitcnt lgkmcnt(0)")

def prologue():
    L = vLANE
    if cfg.stamps: e(f"s_memtime {sr(sST,2)}\ns_memrealtime {sr(sST+16,2)}")
    e(f"""
    s_cmp_ge_u32 s2, 256
    s_cbranch_scc1 L_exit
    s_load_dwordx8 {sr(sPTR,8)}, s[0:1], 0
    s_load_dwordx4 {sr(sPTR+8,4)}, s[0:1], 32
    v_lshrrev_b32_e32 v1, 6, v0
    v_and_b32_e32 v{L}, 63, v0
    v_readfirstlane_b32 s{sW}, v1
    s_lshr_b32 s3, s2, 4
    s_lshl_b32 s3, s3, 3
    s_and_b32 s{sTMP}, s2, 7
    s_add_u32 s3, s3, s{sTMP}
    s_bfe_u32 s{sROW0}, s2, 0x10003
    s_mul_i32 s{sROW0}, s{sROW0}, 192
    s_and_b32 s{sTY}, s{sW}, 1
    s_lshr_b32 s{sP}, s{sW}, 1
    s_lshl_b32 s{sWK}, s{sP}, 13
    s_add_u32 s{sWV}, s{sWK}, 0x4000
    s_mul_i32 s{sTMP}, s3, {QHEAD}
    s_lshl_b32 s{sTMP+1}, s3, 18
    """)
    for g in (0, 1):
        for lc in range(4): e(f"s_mov_b32 s{SOFF+4*g+lc}, {BIAS + g*8192 - lc*896}")
    e(f"""
    v_lshrrev_b32_e32 v4, 3, v{L}
    v_and_b32_e32 v5, 7, v{L}
    v_lshrrev_b32_e32 v6, 1, v4
    v_xor_b32_e32 v2, v5, v6
    v_lshlrev_b32_e32 v2, 4, v2
    v_lshl_add_u32 v2, v4, 9, v2
    v_and_b32_e32 v6, 1, v6
    v_lshlrev_b32_e32 v6, 2, v6
    v_xor_b32_e32 v3, v5, v6
    v_lshlrev_b32_e32 v3, 4, v3
    v_lshl_add_u32 v3, v4, 9, v3
    s_mul_i32 s{sTMP+2}, s{sP}, 0x1040
    v_xor_b32_e32 v{vKD}, s{sTMP+2}, v2
    s_lshl_b32 s{sTMP+2}, s{sP}, 12
    v_add_u32_e32 v{vVD}, s{sTMP+2}, v3
    s_lshl_b32 s{sTMP+2}, s{sTY}, 14
    v_add_u32_e32 v{vKD}, s{sTMP+2}, v{vKD}
    v_add_u32_e32 v{vVD}, s{sTMP+2}, v{vVD}
    s_mul_i32 s{sTMP+2}, s{sTY}, 0x1040
    v_xor_b32_e32 v7, s{sTMP+2}, v2
    s_lshl_b32 s{sTMP+2}, s{sP}, 5
    s_add_u32 s{sTMP+2}, s{sTMP+2}, s{sROW0}
    s_add_u32 s{sTMP+2}, s{sTMP+2}, 128
    s_lshl_b32 s{sTMP+2}, s{sTMP+2}, 9
    v_add_u32_e32 v7, s{sTMP+2}, v7
    s_lshl_b32 s{sTMP+2}, s{sW}, 5
    s_add_u32 s{sTMP+2}, s{sTMP+2}, s{sROW0}
    s_lshl_b32 s{sTMP+2}, s{sTMP+2}, 9
    v_add_u32_e32 v8, s{sTMP+2}, v2
    v_xor_b32_e32 v9, 0x1040, v8
    s_mov_b32 s{sNREC}, {KHEAD + BIAS}
    s_waitcnt lgkmcnt(0)
    """)
    def srd(d, p, off, bias, n):
        e(f"s_add_u32 s{d}, s{p}, s{off}\ns_addc_u32 s{d+1}, s{p+1}, 0")
        if bias: e(f"s_sub_u32 s{d}, s{d}, {bias}\ns_subb_u32 s{d+1}, s{d+1}, 0")
        e(f"s_mov_b32 s{d+2}, {n}\ns_mov_b32 s{d+3}, 0x20000")
    srd(SQ, sPTR, sTMP, BIAS, QHEAD + BIAS)
    srd(SK, sPTR + 2, sTMP + 1, BIAS, KHEAD + BIAS)
    srd(SV, sPTR + 4, sTMP + 1, BIAS, KHEAD + BIAS)
    srd(SO, sPTR + 6, sTMP, 0, QHEAD)
    sQB, sQA, sX = sTMP, sTMP + 1, sTMP + 2
    e(f"""
    s_lshl_b32 s{sQB}, s{sP}, 14
    s_add_u32 s{sQB}, s{sQB}, 81920
    s_lshl_b32 s{sQA}, s{sW}, 14
    s_add_u32 s{sQA}, s{sQA}, 114688
    s_cmp_eq_u32 s{sW}, 3
    s_cselect_b32 s{sQA}, 0x4000, s{sQA}
    s_lshl_b32 s{sX}, s{sTY}, 13
    s_add_u32 s{sX}, s{sX}, s{sQB}
    """)
    emit_dma8(SQ, 7, sX, cfg.q_nt)
    e(f"s_cmp_eq_u32 s{sTY}, 1\ns_cbranch_scc1 L_pro1")
    emit_dma8(SK, vKD, sWK, cfg.kv_nt, 0)
    e(f"v_add_u32_e32 v{vKD}, 0x8000, v{vKD}")
    emit_dma8(SQ, 8, sQA, cfg.q_nt, 0); emit_dma8(SQ, 9, sQA, cfg.q_nt, 8192)
    emit_dma8(SV, vVD, sWV, cfg.kv_nt, 32768)
    e(f"v_add_u32_e32 v{vVD}, 0x8000, v{vVD}")
    emit_dma8(SK, vKD, sWK, cfg.kv_nt, 2 * 32768)
    e(f"v_add_u32_e32 v{vKD}, 0x8000, v{vKD}")
    e(f"s_add_u32 s{sDMAV}, s{sWV}, {3*32768}\ns_add_u32 s{sDMAK}, s{sWK}, {4*32768}")
    e(f"s_mov_b32 s{sTE}, {f2u(cfg.T)}")
    e("s_branch L_pro2\nL_pro1:")
    emit_dma8(SQ, 8, sQA, cfg.q_nt, 0); emit_dma8(SQ, 9, sQA, cfg.q_nt, 8192)
    emit_dma8(SK, vKD, sWK, cfg.kv_nt, 32768)
    e(f"v_add_u32_e32 v{vKD}, 0x8000, v{vKD}")
    e(f"s_add_u32 s{sDMAV}, s{sWV}, {2*32768}\ns_add_u32 s{sDMAK}, s{sWK}, {3*32768}")
    e(f"s_mov_b32 s{sTE}, 0xff800000")
    e("L_pro2:")
    e(f"""
    s_mov_b32 s{sTO}, 0xff800000
    s_mov_b32 s{sFLA}, 0xff800000
    s_mov_b32 s{sFLB}, 0xff800000
    s_mov_b32 s{sT}, {f2u(cfg.T)}
    s_mov_b32 s{sC}, {f2u(1.4426950408889634 / 16)}
    s_mov_b32 s{sPOS}, 0x8000
    s_mov_b32 s{sNEG}, 0xfffe0000
    s_mov_b32 s{sCUR}, 0
    s_mov_b32 s{sCNT}, 15
    v_mov_b32_e32 v{vNMA}, 0
    v_mov_b32_e32 v{vNMB}, 0
    v_mov_b32_e32 v{vLA}, 0
    v_mov_b32_e32 v{vLB}, 0
    """)
    e(f"""
    v_bfe_u32 v4, v{L}, 3, 1
    v_bfe_u32 v5, v{L}, 4, 1
    v_lshlrev_b32_e32 v4, 13, v4
    v_lshl_add_u32 v4, v5, 12, v4
    v_and_b32_e32 v5, 7, v{L}
    v_lshl_add_u32 v4, v5, 7, v4
    v_bfe_u32 v5, v{L}, 1, 3
    v_lshrrev_b32_e32 v6, 5, v{L}
    v_xor_b32_e32 v5, v5, v6
    v_lshl_add_u32 v{vKA}, v5, 4, v4
    v_xor_b32_e32 v{vKA+1}, 32, v{vKA}
    v_xor_b32_e32 v{vKA+2}, 64, v{vKA}
    v_xor_b32_e32 v{vKA+3}, 0x60, v{vKA}
    """)
    e(f"""
    v_bfe_u32 v4, v{L}, 2, 2
    v_lshl_add_u32 v4, v6, 2, v4
    v_lshlrev_b32_e32 v4, 7, v4
    v_bfe_u32 v5, v{L}, 3, 1
    v_lshl_add_u32 v4, v5, 6, v4
    v_bfe_u32 v5, v{L}, 4, 1
    v_lshl_add_u32 v4, v5, 5, v4
    v_and_b32_e32 v5, 1, v{L}
    v_lshl_add_u32 v4, v5, 4, v4
    v_bfe_u32 v5, v{L}, 1, 1
    v_lshl_add_u32 v4, v5, 3, v4
    v_add_u32_e32 v{vVA}, 0x4000, v4
    v_xor_b32_e32 v{vVA+1}, 64, v{vVA}
    """)
    for i in range(4):
        e(f"v_add_u32_e32 v{vT+i}, s{sQA}, v{vKA+i}\nv_add_u32_e32 v{vT+4+i}, s{sQB}, v{vKA+i}")
    for i in range(256): e(f"v_accvgpr_write_b32 a{i}, 0")
    e(f"s_cmp_eq_u32 s{sTY}, 1\ns_cbranch_scc1 L_w1\ns_waitcnt vmcnt(16)\ns_branch L_w2\nL_w1:\ns_waitcnt vmcnt(8)\nL_w2:\ns_barrier")
    for ks in range(16):
        e(f"ds_read_b128 {vr(QB+4*ks,4)}, v{vT+4+(ks&3)} offset:{(ks>>2)*1024}")
    for ks in range(16):
        e(f"ds_read_b128 {vr(QA+4*ks,4)}, v{vT+(ks&3)} offset:{(ks>>2)*1024}")
    e("s_waitcnt lgkmcnt(0)\ns_barrier")
    stamp_at(1)
    e(f"s_cmp_eq_u32 s{sTY}, 1\ns_cbranch_scc1 L_first1")
    first_hs(0)
    e("L_first1:")
    first_hs(1)

def build():
    e(f"{KN}:")
    prologue()
    e(".p2align 6")
    e("L_hsE:"); hsE()
    e("L_hsO:"); hsO()
    tail(0); tail(1)
    slow("E", "E", "L_retE"); slow("O", "O", "L_retO")
    slow("E", "T0", "L_retT0"); slow("O", "T1", "L_retT1")
    rescale("L_rescA", OA); rescale("L_rescB", OB)
    if cfg.stamps:
        e("L_dump:\ns_waitcnt lgkmcnt(0)")
        e(f"""
        s_mov_b32 s{SD}, s{sPTR+10}
        s_mov_b32 s{SD+1}, s{sPTR+11}
        s_mov_b32 s{SD+2}, 0x100000
        s_mov_b32 s{SD+3}, 0x20000
        s_lshl_b32 s3, s2, 2
        s_add_u32 s3, s3, s{sW}
        s_lshl_b32 s3, s3, 7
        v_mov_b32_e32 v0, s3
        s_getreg_b32 s{sST+18}, hwreg(HW_REG_XCC_ID)
        s_getreg_b32 s{sST+19}, hwreg(HW_REG_HW_ID)
        """)
        for i in range(20):
            e(f"v_mov_b32_e32 v1, s{sST+i}\nbuffer_store_dword v1, v0, {sr(SD,4)}, 0 offen offset:{4*i}\ns_nop 1")
    e("L_exit:\ns_endpgm")

HEAD = open("standalone__mha_softmax__near_ridge.s.ref").read().split("\n")[:9]
def main():
    ap = argparse.ArgumentParser()
    ap.add_argument("-o", default="standalone__mha_softmax__near_ridge.s")
    ap.add_argument("opts", nargs="*")
    a = ap.parse_args()
    for o in a.opts:
        k, v = o.split("=")
        assert hasattr(cfg, k), k
        setattr(cfg, k, type(getattr(cfg, k))(eval(v)))
    build()
    txt = "\n".join(HEAD) + "\n; @launch grid=(256,1,1) block=(256,1,1) lds=163840\n"
    txt += f'.amdgcn_target "amdgcn-amd-amdhsa--gfx950"\n.text\n.globl {KN}\n.p2align 8\n.type {KN},@function\n'
    txt += "\n".join(l if l.endswith(":") or l.startswith(".") else "    " + l for l in out) + "\n"
    txt += f""".section .rodata,"a"
.p2align 6
.amdhsa_kernel {KN}
  .amdhsa_next_free_vgpr 512
  .amdhsa_next_free_sgpr 102
  .amdhsa_accum_offset 256
  .amdhsa_group_segment_fixed_size 0
  .amdhsa_kernarg_size 48
  .amdhsa_user_sgpr_count 2
  .amdhsa_user_sgpr_kernarg_segment_ptr 1
  .amdhsa_system_sgpr_workgroup_id_x 1
.end_amdhsa_kernel
"""
    open(a.o, "w").write(txt)
main()
```

```python
import sys, re, struct, argparse

KN = "standalone__mha_softmax__near_ridge_kernel"
BIAS = 4096
QHEAD = 368 * 512
KHEAD = 512 * 512

def f2u(x): return struct.unpack("<I", struct.pack("<f", x))[0]

SQ, SK, SV, SO = 4, 8, 12, 16
SOFF = 20
sCNT, sCUR, sDELTA, sDMAK, sDMAV = 28, 29, 30, 31, 32
sC, sTE, sTO, sFLA, sFLB = 33, 34, 35, 36, 37
sW, sWK, sWV, sNREC = 38, 39, 40, 41
sPOS, sNEG, sT = 42, 43, 44
sTMP = 45
sPTR = 48
sRET = 60
sP, sTY, sROW0 = 62, 63, 64
SD = 68
sST = 72

QA, QB = 0, 64
SA2, SB, S1 = 128, 144, 160
FR = 176
vKA = 208
vVA = 212
vKD, vVD = 214, 215
vNMA, vNMB, vLA, vLB = 216, 217, 218, 219
vMXA, vMXB, vMX = 220, 221, 222
vT = 224
vLANE = 240
OA, OB = 0, 128

def vr(b, n): return f"v[{b}:{b+n-1}]"
def ar(b, n): return f"a[{b}:{b+n-1}]"
def sr(b, n): return f"s[{b}:{b+n-1}]"
def frag(n): return FR + 4 * (n % 8)

class Cfg:
    stamps = False
    T = 8.0
    waitlag = 3
    LA_E = 3
    LA_O = 4
    preE = 0
    preO = 8
    q_nt = False
    kv_nt = False
    o_nt = False
    diag = -1

cfg = Cfg()
out = []
def e(s):
    for l in s.split("\n"):
        l = l.strip()
        if l: out.append(l)

nstamp = [0]
def stamp():
    if cfg.stamps:
        e(f"s_memtime {sr(sST + 2 * nstamp[0], 2)}")
        nstamp[0] += 1

def mfma_qk(S, Q, ks, n):
    c = "0" if ks == 0 else vr(S, 16)
    return f"v_mfma_f32_32x32x16_bf16 {vr(S,16)}, {vr(frag(n),4)}, {vr(Q+4*ks,4)}, {c}"
def mfma_pv(O, S, m, db, n):
    return f"v_mfma_f32_32x32x16_bf16 {ar(O+16*db,16)}, {vr(frag(n),4)}, {vr(S+8*m,4)}, {ar(O+16*db,16)}"
def rd_k(ks, n):
    return [f"ds_read_b128 {vr(frag(n),4)}, v{vKA+(ks&3)} offset:{(ks>>2)*1024}"]
def rd_v(i, n):
    m, db = i >> 3, i & 7
    return [f"ds_read_b64_tr_b16 {vr(frag(n)+2*g,2)}, v{vVA+(db&1)} offset:{(g*8+m*4+(db>>1))*1024}" for g in (0, 1)]
def dma8(srd, va, base, nt=False, add=0):
    r = []
    for g in (0, 1):
        off = add + 4096 * g
        r.append(f"s_add_u32 m0, s{base}, {off}" if off else f"s_mov_b32 m0, s{base}")
        for lc in range(4):
            r.append(f"buffer_load_dwordx4 v{va}, {sr(srd,4)}, s{SOFF+4*g+lc} offen offset:{1024*lc}{' nt' if nt else ''} lds")
    return r
def emit_dma8(srd, va, base, nt=False, add=0):
    for x in dma8(srd, va, base, nt, add):
        e(x)
        if "m0" in x: e("s_nop 0")

def max_chain(S, dst):
    r = [f"v_max3_f32 v{dst}, v{S}, v{S+1}, v{S+2}"]
    for i in range(3, 15, 2): r.append(f"v_max3_f32 v{dst}, v{dst}, v{S+i}, v{S+i+1}")
    r.append(f"v_max_f32_e32 v{dst}, v{dst}, v{S+15}")
    return r
def fma1(S, i, nm): return f"v_fma_f32 v{S+i}, v{S+i}, s{sC}, v{nm}"
def ilv(*ls):
    r = []
    for t in range(max(map(len, ls))):
        for l in ls:
            if t < len(l): r.append(l[t])
    return r
def pre_check_single():
    return max_chain(S1, vMXA) + [f"v_fma_f32 v{vMXA}, v{vMXA}, s{sC}, v{vNMA}"] + \
        [fma1(S1, i, vNMA) for i in range(cfg.preE)] + [f"v_cmp_lt_f32_e32 vcc, s{sTE}, v{vMXA}"]
def pre_check_double():
    return ilv(max_chain(SA2, vMXA), max_chain(SB, vMXB)) + \
        [f"v_fma_f32 v{vMXA}, v{vMXA}, s{sC}, v{vNMA}", f"v_fma_f32 v{vMXB}, v{vMXB}, s{sC}, v{vNMB}"] + \
        ilv([fma1(SA2, i, vNMA) for i in range(cfg.preO)], [fma1(SB, i, vNMB) for i in range(cfg.preO)]) + \
        [f"v_max_f32_e32 v{vMX}, v{vMXA}, v{vMXB}", f"v_cmp_lt_f32_e32 vcc, s{sTO}, v{vMX}"]
def soft_half(S, m, nm, l, pre):
    b = 8 * m
    r = []
    for t in range(-1, 10):
        i = b + t + 1
        if 0 <= t + 1 < 8 and i >= pre: r.append(fma1(S, i, nm))
        if 0 <= t < 8: r.append(f"v_exp_f32_e32 v{S+b+t}, v{S+b+t}")
        if 0 <= t - 1 < 8: r.append(f"v_add_f32_e32 v{l}, v{l}, v{S+b+t-1}")
        if t - 1 >= 1 and (t - 1) % 2 == 1 and t - 1 < 8:
            j = (t - 1) // 2
            r.append(f"v_cvt_pk_bf16_f32 v{S+b+j}, v{S+b+2*j}, v{S+b+2*j+1}")
    return r

def cost(s): return 2 if s.startswith("v_exp") else 1

class Sched:
    def __init__(self, mf, pending):
        self.mf = mf
        self.rd = {}
        self.fill = {}
        self.head = {}
        self.pending = pending
    def reads(self, items):
        for g, n, t in items: self.rd.setdefault(g, []).append((n, t))
    def put(self, g, t): self.fill.setdefault(g, []).append(t)
    def puthead(self, g, t): self.head.setdefault(g, []).append(t)
    def load(self, g):
        return len(self.rd.get(g, [])) + sum(map(cost, self.fill.get(g, []))) + len(self.head.get(g, [])) + self.waits.get(g, 0)
    def plan_waits(self):
        q = list(self.pending)
        q = [(n, -1 - a) for n, a in q]
        done = 0
        w = {}
        for i, (t, n) in enumerate(self.mf):
            for (fn, _) in self.rd.get(i - 1, []): q.append((fn, i - 1))
            if n is None: continue
            last = max(k for k, (fn, _) in enumerate(q) if fn == n) + 1
            if last > done:
                k = last
                while k < len(q) and q[k][1] <= i - 1 - cfg.waitlag: k += 1
                N = min(15, len(q) - k)
                done = len(q) - N
                w[i] = N
        self.waitN = w
        self.waits = {i - 1: 1 for i in w}
    def spread(self, items, g0, g1, cap=6):
        tot = sum(map(cost, items)) + sum(self.load(g) for g in range(g0, g1 + 1))
        lvl = tot / (g1 - g0 + 1)
        g = g0; acc = 0.0; used = 0
        base = {x: self.load(x) for x in range(g0, g1 + 1)}
        cum_target = 0.0; cum = 0
        it = list(items)
        for g in range(g0, g1 + 1):
            cum_target += lvl; cum += base[g]
            while it and (cum + cost(it[0]) / 2 <= cum_target + 1e-9 or g == g1):
                x = it.pop(0); self.put(g, x); cum += cost(x)
    def emit(self, name):
        loads = []
        def gap(g):
            for t in self.head.get(g, []): e(t)
            for _, t in self.rd.get(g, []): e(t)
            for t in self.fill.get(g, []): e(t)
        gap(-1)
        for i, (t, n) in enumerate(self.mf):
            if i in self.waitN: e(f"s_waitcnt lgkmcnt({self.waitN[i]})")
            e(t)
            gap(i)
            loads.append(self.load(i))
        print(f"{name}: gap loads {' '.join(map(str, loads))}  total {sum(loads)} pre {self.load(-1)}", file=sys.stderr)

def adv_salu(kind):
    r = [f"s_add_u32 s{sDMAV}, s{sCUR}, s{sWV}" if kind == "E" else f"s_add_u32 s{sDMAK}, s{sCUR}, s{sWK}"]
    r += [f"s_add_u32 s{sCUR}, s{sCUR}, s{sPOS}",
          f"s_cmp_eq_u32 s{sCUR}, 0x28000\ns_cselect_b32 s{sDELTA}, s{sNEG}, s{sPOS}\ns_cselect_b32 s{sCUR}, 0, s{sCUR}"]
    return r
def k_adv(): return [f"v_add_u32_e32 v{vKA+i}, s{sDELTA}, v{vKA+i}" for i in range(4)]
def v_adv(): return [f"v_add_u32_e32 v{vVA+i}, s{sDELTA}, v{vVA+i}" for i in range(2)]
def dma_stream():
    r = [f"s_cmp_ge_u32 s{sCNT}, 2\ns_cselect_b32 s{SV+2}, s{sNREC}, 0",
         f"s_cmp_ge_u32 s{sCNT}, 4\ns_cselect_b32 s{SK+2}, s{sNREC}, 0"]
    r += dma8(SV, vVD, sDMAV, cfg.kv_nt) + [f"v_add_u32_e32 v{vVD}, 0x8000, v{vVD}"]
    r += dma8(SK, vKD, sDMAK, cfg.kv_nt) + [f"v_add_u32_e32 v{vKD}, 0x8000, v{vKD}"]
    return r

_oldcost = cost
def cost(s): return sum(2 if x.startswith("v_exp") else 1 for x in s.split("\n"))

def place_dma(S, g0, step=2):
    g = g0
    for x in dma_stream():
        if x.startswith("buffer_load"):
            S.put(g, x); g += step
        elif "m0" in x: S.put(g - 1, x)
        elif x.startswith("s_cmp"): S.put(g0 - 1, x)
        else: S.put(g - step, x)
    return g

def hsE():
    mf = []
    for ks in range(16):
        mf.append((mfma_qk(SA2, QA, ks, ks), ks)); mf.append((mfma_qk(SB, QB, ks, ks), None))
    for i in range(16): mf.append((mfma_pv(OA, S1, i >> 3, i & 7, 16 + i), 16 + i))
    S = Sched(mf, [(n, cfg.LA_E - n + 1) for n in range(cfg.LA_E)])
    rd = []
    g = 0
    for n in range(cfg.LA_E, 16):
        g = max(g, 2 * n - 15); rd.append((g, n, rd_k(n, n)[0])); g += 1
    for i in range(8):
        a, b = rd_v(i, 16 + i); rd.append((17 + 2 * i, 16 + i, a)); rd.append((18 + 2 * i, 16 + i, b))
    k = 0
    for i in range(8, 16):
        for x in rd_v(i, 16 + i):
            rd.append((33 + (k * 10) // 16, 16 + i, x)); k += 1
    for n in range(cfg.LA_O): rd.append((47 - cfg.LA_O + n, 32 + n, rd_k(n, 32 + n)[0]))
    S.reads(rd); S.plan_waits()
    S.puthead(0, "s_cbranch_vccnz L_slowE\nL_retE:")
    S.puthead(47 - cfg.LA_O, "s_waitcnt vmcnt(24)"); S.puthead(47 - cfg.LA_O, "s_barrier")
    for x in v_adv(): S.put(0, x)
    place_dma(S, 2, 2) if False else place_dma_e(S)
    S.spread(soft_half(S1, 0, vNMA, vLA, cfg.preE) + soft_half(S1, 1, vNMA, vLA, cfg.preE), 0, 30)
    S.put(46, f"s_sub_u32 s{sCNT}, s{sCNT}, 1")
    S.spread(pre_check_double(), 34, 47)
    S.put(47, "s_cbranch_scc1 L_tail1")
    S.emit("hsE")
def place_dma_e(S):
    g = place_dma(S, 1, 2) if False else None
    st = dma_stream()
    S.put(0, st[0]); S.put(1, st[1])
    g = 2
    for x in st[2:]:
        if x.startswith("buffer_load"): S.put(g, x); g += 2
        elif "m0" in x: S.put(g - 1, x)
        else: S.put(g - 1, x)
    a = adv_salu("E")
    S.put(19, a[0]); S.put(21, a[1]); S.put(23, a[2])
    for i, x in enumerate(k_adv()): S.put(27 + 2 * (i // 2) + 0, x)

def hsO():
    mf = []
    for ks in range(16): mf.append((mfma_qk(S1, QA, ks, ks), ks))
    for i in range(16):
        mf.append((mfma_pv(OA, SA2, i >> 3, i & 7, 16 + i), 16 + i)); mf.append((mfma_pv(OB, SB, i >> 3, i & 7, 16 + i), None))
    S = Sched(mf, [(n, cfg.LA_O - n) for n in range(cfg.LA_O)])
    rd = []
    for n in range(cfg.LA_O, 16): rd.append((max(0, n - cfg.LA_O - 1), n, rd_k(n, n)[0]))
    for i in range(16):
        a, b = rd_v(i, 16 + i); rd.append((11 + 2 * i, 16 + i, a)); rd.append((12 + 2 * i, 16 + i, b))
    for n in range(cfg.LA_E): rd.append((46 - cfg.LA_E + n, 32 + n, rd_k(n, 32 + n)[0]))
    S.reads(rd); S.plan_waits()
    S.puthead(0, "s_cbranch_vccnz L_slowO\nL_retO:")
    S.puthead(46 - cfg.LA_E, "s_waitcnt vmcnt(16)"); S.puthead(46 - cfg.LA_E, "s_barrier")
    for i, x in enumerate(v_adv()): S.put(8 + i, x)
    S.spread(ilv(soft_half(SA2, 0, vNMA, vLA, cfg.preO), soft_half(SB, 0, vNMB, vLB, cfg.preO)), 0, 14)
    S.spread(ilv(soft_half(SA2, 1, vNMA, vLA, cfg.preO), soft_half(SB, 1, vNMB, vLB, cfg.preO)), 15, 30)
    a = adv_salu("O")
    S.put(32, a[0]); S.put(33, a[1]); S.put(34, a[2])
    for i, x in enumerate(k_adv()): S.put(36 + i, x)
    S.put(46, f"s_sub_u32 s{sCNT}, s{sCNT}, 1")
    S.spread(pre_check_single(), 32, 47)
    S.put(47, "s_cbranch_scc0 L_hsE")
    S.emit("hsO")

def first_hs(ty):
    mf = []
    for ks in range(16):
        if ty == 0:
            mf.append((mfma_qk(SA2, QA, ks, ks), ks)); mf.append((mfma_qk(SB, QB, ks, ks), None))
        else: mf.append((mfma_qk(S1, QA, ks, ks), ks))
    S = Sched(mf, [])
    st = 2 if ty == 0 else 1
    rd = [(-1, n, rd_k(n, n)[0]) for n in range(8)]
    for n in range(8, 16): rd.append((st * (n - 8) + st - 1, n, rd_k(n, n)[0]))
    S.reads(rd); S.plan_waits()
    d = dma8(SV, vVD, sDMAV, cfg.kv_nt) + [f"v_add_u32_e32 v{vVD}, 0x8000, v{vVD}"] + \
        dma8(SK, vKD, sDMAK, cfg.kv_nt) + [f"v_add_u32_e32 v{vKD}, 0x8000, v{vKD}"]
    g = 0
    for x in d:
        if x.startswith("buffer_load"): S.put(g, x); g += st
        else: S.put(g - 1, x)
    S.emit(f"first{ty}")
    if ty == 1:
        e(f"s_add_u32 s{sDMAV}, s{sWV}, {4*32768}")
    for x in adv_salu("E" if ty == 0 else "O"): e(x)
    for x in k_adv(): e(x)
    e("s_nop 7")
    e(f"s_waitcnt vmcnt({24 if ty == 0 else 16})\ns_barrier")
    for n in range(cfg.LA_O if ty == 0 else cfg.LA_E): e(rd_k(n, n)[0])
    for x in (pre_check_double() if ty == 0 else pre_check_single()): e(x)
    e(f"s_sub_u32 s{sCNT}, s{sCNT}, 1")
    e(f"s_branch {'L_hsO' if ty == 0 else 'L_hsE'}")

def slow_unit(tag, S, pre, mx, nm, l, fl, resc):
    e(f"s_cmp_lg_u32 s{fl}, 0")
    e(f"s_cbranch_scc1 L_do{tag}")
    e(f"v_cmp_lt_f32_e32 vcc, s{sT}, v{mx}")
    e(f"s_cbranch_vccz L_skip{tag}")
    e(f"L_do{tag}:")
    e(f"v_mov_b32_e32 v{vT}, v{mx}\ns_nop 1\nv_permlane32_swap_b32_e32 v{mx}, v{vT}\ns_nop 1")
    e(f"v_max3_f32 v{mx}, v{mx}, v{vT}, s{fl}")
    e(f"v_sub_f32_e32 v{nm}, v{nm}, v{mx}")
    for i in range(pre): e(f"v_sub_f32_e32 v{S+i}, v{S+i}, v{mx}")
    e(f"s_cmp_lg_u32 s{fl}, 0")
    e(f"s_mov_b32 s{fl}, 0")
    e(f"s_cbranch_scc1 L_skip{tag}")
    e(f"v_exp_f32_e64 v{vT}, -v{mx}\ns_nop 0")
    e(f"v_mul_f32_e32 v{l}, v{l}, v{vT}")
    e(f"s_call_b64 {sr(sRET,2)}, {resc}")
    e(f"L_skip{tag}:")
def slow(kind, tag, ret):
    e(f"L_slow{tag}:")
    if kind == "E":
        slow_unit(tag + "a", S1, cfg.preE, vMXA, vNMA, vLA, sFLA, "L_rescA")
        e(f"s_mov_b32 s{sTE}, s{sT}")
    else:
        slow_unit(tag + "a", SA2, cfg.preO, vMXA, vNMA, vLA, sFLA, "L_rescA")
        slow_unit(tag + "b", SB, cfg.preO, vMXB, vNMB, vLB, sFLB, "L_rescB")
        e(f"s_mov_b32 s{sTO}, s{sT}")
    e(f"s_branch {ret}")
def rescale(name, O):
    e(f"{name}:\ns_nop 15")
    for i in range(0, 128, 4):
        for j in range(4): e(f"v_accvgpr_read_b32 v{vT+1+j}, a{O+i+j}")
        for j in range(4): e(f"v_mul_f32_e32 v{vT+1+j}, v{vT+1+j}, v{vT}")
        for j in range(4): e(f"v_accvgpr_write_b32 a{O+i+j}, v{vT+1+j}")
    e(f"s_nop 1\ns_setpc_b64 {sr(sRET,2)}")

vWA = 0
vRA = 4
vGA = 5
vXW, vXR = 9, 10
vF0, vF1 = 12, 14
vE = 16
ML_OFF = 147456

def out_tile(getregs, dbs, lc0):
    nb = 0
    for k in range(0, len(dbs), 2):
        lcs = k // 2
        for db in dbs[k:k + 2]:
            w = vE + 32 * (nb % 2); nb += 1
            getregs(db, w)
            for j in range(8): e(f"v_cvt_pk_bf16_f32 v{w+16+j}, v{w+2*j}, v{w+2*j+1}")
            for g1 in (0, 1):
                e(f"ds_write_b128 v{vWA+(db&1)*2+g1}, {vr(w+16+4*g1,4)} offset:{lcs*4096}")
        r = 96 + 16 * (lcs % 2)
        e("s_waitcnt lgkmcnt(0)")
        for rb in range(4): e(f"ds_read_b128 {vr(r+4*rb,4)}, v{vRA} offset:{lcs*4096+rb*1024}")
        for rb in range(4):
            e(f"s_waitcnt lgkmcnt({3-rb})")
            e(f"buffer_store_dwordx4 {vr(r+4*rb,4)}, v{vGA+rb}, {sr(SO,4)}, 0 offen offset:{(lc0+lcs)*128}{' nt' if cfg.o_nt else ''}")

def tail(ty):
    e(f"L_tail{ty}:")
    stamp_at(2)
    e("s_waitcnt vmcnt(0)\ns_barrier")
    for x in v_adv(): e(x)
    e(f"s_cbranch_vccnz L_slowT{ty}\nL_retT{ty}:")
    mf = []
    for i in range(16):
        if ty == 0: mf.append((mfma_pv(OA, S1, i >> 3, i & 7, i), i))
        else:
            mf.append((mfma_pv(OA, SA2, i >> 3, i & 7, i), i)); mf.append((mfma_pv(OB, SB, i >> 3, i & 7, i), None))
    S = Sched(mf, [])
    st = 1 if ty == 0 else 2
    rd = []
    for i in range(16):
        for x in rd_v(i, i): rd.append((-1 if i < 7 else st * (i - 7) + st - 1, i, x))
    S.reads(rd); S.plan_waits()
    if ty == 0:
        for x in soft_half(S1, 0, vNMA, vLA, cfg.preE): S.put(-1, x)
        S.put(-1, "s_nop 0")
        S.spread(soft_half(S1, 1, vNMA, vLA, cfg.preE), 0, 6)
    else:
        for x in ilv(soft_half(SA2, 0, vNMA, vLA, cfg.preO), soft_half(SB, 0, vNMB, vLB, cfg.preO)): S.put(-1, x)
        S.put(-1, "s_nop 0")
        S.spread(ilv(soft_half(SA2, 1, vNMA, vLA, cfg.preO), soft_half(SB, 1, vNMB, vLB, cfg.preO)), 0, 14)
    S.emit(f"tail{ty}")
    stamp_at(3)
    L = vLANE
    e(f"""
    s_lshl_b32 s{sTMP}, s{sW}, 14
    s_add_u32 s{sTMP}, s{sTMP}, 0x10000
    v_and_b32_e32 v{vE}, 7, v{L}
    v_lshrrev_b32_e32 v{vE+1}, 5, v{L}
    v_xor_b32_e32 v{vE+1}, v{vE+1}, v{vE}
    v_and_b32_e32 v{vE+2}, 31, v{L}
    v_lshlrev_b32_e32 v{vE+2}, 7, v{vE+2}
    v_lshl_add_u32 v{vE+2}, v{vE+1}, 4, v{vE+2}
    v_add_u32_e32 v{vWA}, s{sTMP}, v{vE+2}
    v_xor_b32_e32 v{vWA+1}, 32, v{vWA}
    v_xor_b32_e32 v{vWA+2}, 64, v{vWA}
    v_xor_b32_e32 v{vWA+3}, 0x60, v{vWA}
    v_lshrrev_b32_e32 v{vE+1}, 3, v{L}
    v_xor_b32_e32 v{vE+2}, v{vE+1}, v{vE}
    v_lshlrev_b32_e32 v{vE+2}, 4, v{vE+2}
    v_lshl_add_u32 v{vE+2}, v{vE+1}, 7, v{vE+2}
    v_add_u32_e32 v{vRA}, s{sTMP}, v{vE+2}
    v_lshlrev_b32_e32 v{vE}, 4, v{vE}
    v_lshl_add_u32 v{vE}, v{vE+1}, 9, v{vE}
    s_lshl_b32 s{sTMP}, s{sW}, 5
    s_add_u32 s{sTMP}, s{sTMP}, s{sROW0}
    s_lshl_b32 s{sTMP}, s{sTMP}, 9
    v_add_u32_e32 v{vGA}, s{sTMP}, v{vE}
    v_add_u32_e32 v{vGA+1}, 0x1000, v{vGA}
    v_add_u32_e32 v{vGA+2}, 0x2000, v{vGA}
    v_add_u32_e32 v{vGA+3}, 0x3000, v{vGA}
    s_lshl_b32 s{sTMP}, s{sW}, 14
    s_cmp_eq_u32 s{sW}, 3
    s_cselect_b32 s{sTMP}, 0x20000, s{sTMP}
    s_xor_b32 s{sTMP+1}, s{sW}, 1
    s_lshl_b32 s{sTMP+2}, s{sTMP+1}, 14
    s_cmp_eq_u32 s{sTMP+1}, 3
    s_cselect_b32 s{sTMP+2}, 0x20000, s{sTMP+2}
    v_lshlrev_b32_e32 v{vE}, 4, v{L}
    v_add_u32_e32 v{vXW}, s{sTMP}, v{vE}
    v_add_u32_e32 v{vXR}, s{sTMP+2}, v{vE}
    """)
    for l in (vLA, vLB):
        e(f"v_mov_b32_e32 v{vT}, v{l}\ns_nop 1\nv_permlane32_swap_b32_e32 v{l}, v{vT}\ns_nop 1\nv_add_f32_e32 v{l}, v{l}, v{vT}")
    e(f"""
    s_lshl_b32 s{sTMP}, s{sW}, 9
    s_add_u32 s{sTMP}, s{sTMP}, {ML_OFF}
    v_lshlrev_b32_e32 v{vE}, 3, v{L}
    v_add_u32_e32 v{vE}, s{sTMP}, v{vE}
    v_xor_b32_e32 v11, 0x200, v{vE}
    v_mov_b32_e32 v{vE+2}, v{vNMB}
    v_mov_b32_e32 v{vE+3}, v{vLB}
    ds_write_b64 v{vE}, {vr(vE+2,2)}
    """)
    snd = OB + 64 * (1 - ty)
    for i in range(16): e(f"ds_write_b128 v{vXW}, {ar(snd+4*i,4)} offset:{1024*i}")
    e(f"v_rcp_f32_e32 v{vF0}, v{vLA}\ns_nop 0")
    def getA(db, w):
        for j in range(16): e(f"v_accvgpr_read_b32 v{w+j}, a{OA+16*db+j}")
        for j in range(0, 16, 2): e(f"v_pk_mul_f32 {vr(w+j,2)}, {vr(w+j,2)}, {vr(vF0,2)} op_sel_hi:[1,0]")
    out_tile(getA, list(range(8)), 0)
    stamp_at(4)
    e("s_waitcnt lgkmcnt(0)\ns_barrier")
    e(f"ds_read_b64 {vr(vE,2)}, v11")
    X = 128
    for i in range(16): e(f"ds_read_b128 {vr(X+4*i,4)}, v{vXR} offset:{1024*i}")
    e(f"""
    s_lshl_b32 s{sTMP}, s{sP}, 5
    s_lshl_b32 s{sTMP+1}, s{sW}, 5
    s_sub_u32 s{sTMP}, s{sTMP}, s{sTMP+1}
    s_add_u32 s{sTMP}, s{sTMP}, 128
    s_lshl_b32 s{sTMP}, s{sTMP}, 9
    """)
    for rb in range(4): e(f"v_add_u32_e32 v{vGA+rb}, s{sTMP}, v{vGA+rb}")
    e(f"""
    s_waitcnt lgkmcnt(15)
    v_min_f32_e32 v{vE+2}, v{vE}, v{vNMB}
    v_sub_f32_e32 v{vF0}, v{vE+2}, v{vNMB}
    v_sub_f32_e32 v{vF1}, v{vE+2}, v{vE}
    v_exp_f32_e32 v{vF0}, v{vF0}
    v_exp_f32_e32 v{vF1}, v{vF1}
    s_nop 0
    v_mul_f32_e32 v{vE+2}, v{vF0}, v{vLB}
    v_fmac_f32_e32 v{vE+2}, v{vF1}, v{vE+1}
    v_rcp_f32_e32 v{vE+2}, v{vE+2}
    s_nop 0
    v_mul_f32_e32 v{vF0}, v{vF0}, v{vE+2}
    v_mul_f32_e32 v{vF1}, v{vF1}, v{vE+2}
    s_waitcnt lgkmcnt(0)
    """)
    def getB(db, w):
        x = X + 16 * (db - 4 * ty)
        for j in range(16): e(f"v_accvgpr_read_b32 v{w+j}, a{OB+16*db+j}")
        for j in range(0, 16, 2): e(f"v_pk_mul_f32 {vr(w+j,2)}, {vr(w+j,2)}, {vr(vF0,2)} op_sel_hi:[1,0]")
        for j in range(0, 16, 2): e(f"v_pk_fma_f32 {vr(w+j,2)}, {vr(x+j,2)}, {vr(vF1,2)}, {vr(w+j,2)} op_sel_hi:[1,0,1]")
    out_tile(getB, list(range(4 * ty, 4 * ty + 4)), 2 * ty)
    stamp_at(5)
    if cfg.stamps:
        e("s_waitcnt vmcnt(0)")
        stamp_at(6)
        e(f"s_memrealtime {sr(sST+14,2)}")
        e("s_branch L_dump")
    elif cfg.diag >= 0:
        e("s_waitcnt vmcnt(0)")
        stamp_at(6)
        e("s_branch L_diag")
    else:
        e("s_endpgm")

def stamp_at(i):
    if cfg.stamps: e(f"s_memtime {sr(sST+2*i,2)}\ns_waitcnt lgkmcnt(0)")
    if cfg.diag >= 0: e(f"{'s_memtime' if cfg.diag >= 100 else 's_memrealtime'} {sr(sST+2*i,2)}\ns_waitcnt lgkmcnt(0)")

def prologue():
    L = vLANE
    if cfg.stamps: e(f"s_memtime {sr(sST,2)}\ns_memrealtime {sr(sST+16,2)}")
    if cfg.diag >= 0: e(f"{'s_memtime' if cfg.diag >= 100 else 's_memrealtime'} {sr(sST,2)}\ns_memrealtime {sr(sST+16,2)}")
    e(f"""
    s_cmp_ge_u32 s2, 256
    s_cbranch_scc1 L_exit
    s_load_dwordx8 {sr(sPTR,8)}, s[0:1], 0
    s_load_dwordx4 {sr(sPTR+8,4)}, s[0:1], 32
    v_lshrrev_b32_e32 v1, 6, v0
    v_and_b32_e32 v{L}, 63, v0
    v_readfirstlane_b32 s{sW}, v1
    s_lshr_b32 s3, s2, 4
    s_lshl_b32 s3, s3, 3
    s_and_b32 s{sTMP}, s2, 7
    s_add_u32 s3, s3, s{sTMP}
    s_bfe_u32 s{sROW0}, s2, 0x10003
    s_mul_i32 s{sROW0}, s{sROW0}, 192
    s_and_b32 s{sTY}, s{sW}, 1
    s_lshr_b32 s{sP}, s{sW}, 1
    s_lshl_b32 s{sWK}, s{sP}, 13
    s_add_u32 s{sWV}, s{sWK}, 0x4000
    s_mul_i32 s{sTMP}, s3, {QHEAD}
    s_lshl_b32 s{sTMP+1}, s3, 18
    """)
    for g in (0, 1):
        for lc in range(4): e(f"s_mov_b32 s{SOFF+4*g+lc}, {BIAS + g*8192 - lc*896}")
    e(f"""
    v_lshrrev_b32_e32 v4, 3, v{L}
    v_and_b32_e32 v5, 7, v{L}
    v_lshrrev_b32_e32 v6, 1, v4
    v_xor_b32_e32 v2, v5, v6
    v_lshlrev_b32_e32 v2, 4, v2
    v_lshl_add_u32 v2, v4, 9, v2
    v_and_b32_e32 v6, 1, v6
    v_lshlrev_b32_e32 v6, 2, v6
    v_xor_b32_e32 v3, v5, v6
    v_lshlrev_b32_e32 v3, 4, v3
    v_lshl_add_u32 v3, v4, 9, v3
    s_mul_i32 s{sTMP+2}, s{sP}, 0x1040
    v_xor_b32_e32 v{vKD}, s{sTMP+2}, v2
    s_lshl_b32 s{sTMP+2}, s{sP}, 12
    v_add_u32_e32 v{vVD}, s{sTMP+2}, v3
    s_lshl_b32 s{sTMP+2}, s{sTY}, 14
    v_add_u32_e32 v{vKD}, s{sTMP+2}, v{vKD}
    v_add_u32_e32 v{vVD}, s{sTMP+2}, v{vVD}
    s_mul_i32 s{sTMP+2}, s{sTY}, 0x1040
    v_xor_b32_e32 v7, s{sTMP+2}, v2
    s_lshl_b32 s{sTMP+2}, s{sP}, 5
    s_add_u32 s{sTMP+2}, s{sTMP+2}, s{sROW0}
    s_add_u32 s{sTMP+2}, s{sTMP+2}, 128
    s_lshl_b32 s{sTMP+2}, s{sTMP+2}, 9
    v_add_u32_e32 v7, s{sTMP+2}, v7
    s_lshl_b32 s{sTMP+2}, s{sW}, 5
    s_add_u32 s{sTMP+2}, s{sTMP+2}, s{sROW0}
    s_lshl_b32 s{sTMP+2}, s{sTMP+2}, 9
    v_add_u32_e32 v8, s{sTMP+2}, v2
    v_xor_b32_e32 v9, 0x1040, v8
    s_mov_b32 s{sNREC}, {KHEAD + BIAS}
    s_waitcnt lgkmcnt(0)
    """)
    def srd(d, p, off, bias, n):
        e(f"s_add_u32 s{d}, s{p}, s{off}\ns_addc_u32 s{d+1}, s{p+1}, 0")
        if bias: e(f"s_sub_u32 s{d}, s{d}, {bias}\ns_subb_u32 s{d+1}, s{d+1}, 0")
        e(f"s_mov_b32 s{d+2}, {n}\ns_mov_b32 s{d+3}, 0x20000")
    srd(SQ, sPTR, sTMP, BIAS, QHEAD + BIAS)
    srd(SK, sPTR + 2, sTMP + 1, BIAS, KHEAD + BIAS)
    srd(SV, sPTR + 4, sTMP + 1, BIAS, KHEAD + BIAS)
    srd(SO, sPTR + 6, sTMP, 0, QHEAD)
    sQB, sQA, sX = sTMP, sTMP + 1, sTMP + 2
    e(f"""
    s_lshl_b32 s{sQB}, s{sP}, 14
    s_add_u32 s{sQB}, s{sQB}, 81920
    s_lshl_b32 s{sQA}, s{sW}, 14
    s_add_u32 s{sQA}, s{sQA}, 114688
    s_cmp_eq_u32 s{sW}, 3
    s_cselect_b32 s{sQA}, 0x4000, s{sQA}
    s_lshl_b32 s{sX}, s{sTY}, 13
    s_add_u32 s{sX}, s{sX}, s{sQB}
    """)
    emit_dma8(SQ, 7, sX, cfg.q_nt)
    e(f"s_cmp_eq_u32 s{sTY}, 1\ns_cbranch_scc1 L_pro1")
    emit_dma8(SK, vKD, sWK, cfg.kv_nt, 0)
    e(f"v_add_u32_e32 v{vKD}, 0x8000, v{vKD}")
    emit_dma8(SQ, 8, sQA, cfg.q_nt, 0); emit_dma8(SQ, 9, sQA, cfg.q_nt, 8192)
    emit_dma8(SV, vVD, sWV, cfg.kv_nt, 32768)
    e(f"v_add_u32_e32 v{vVD}, 0x8000, v{vVD}")
    emit_dma8(SK, vKD, sWK, cfg.kv_nt, 2 * 32768)
    e(f"v_add_u32_e32 v{vKD}, 0x8000, v{vKD}")
    e(f"s_add_u32 s{sDMAV}, s{sWV}, {3*32768}\ns_add_u32 s{sDMAK}, s{sWK}, {4*32768}")
    e(f"s_mov_b32 s{sTE}, {f2u(cfg.T)}")
    e("s_branch L_pro2\nL_pro1:")
    emit_dma8(SQ, 8, sQA, cfg.q_nt, 0); emit_dma8(SQ, 9, sQA, cfg.q_nt, 8192)
    emit_dma8(SK, vKD, sWK, cfg.kv_nt, 32768)
    e(f"v_add_u32_e32 v{vKD}, 0x8000, v{vKD}")
    e(f"s_add_u32 s{sDMAV}, s{sWV}, {2*32768}\ns_add_u32 s{sDMAK}, s{sWK}, {3*32768}")
    e(f"s_mov_b32 s{sTE}, 0xff800000")
    e("L_pro2:")
    e(f"""
    s_mov_b32 s{sTO}, 0xff800000
    s_mov_b32 s{sFLA}, 0xff800000
    s_mov_b32 s{sFLB}, 0xff800000
    s_mov_b32 s{sT}, {f2u(cfg.T)}
    s_mov_b32 s{sC}, {f2u(1.4426950408889634 / 16)}
    s_mov_b32 s{sPOS}, 0x8000
    s_mov_b32 s{sNEG}, 0xfffe0000
    s_mov_b32 s{sCUR}, 0
    s_mov_b32 s{sCNT}, 15
    v_mov_b32_e32 v{vNMA}, 0
    v_mov_b32_e32 v{vNMB}, 0
    v_mov_b32_e32 v{vLA}, 0
    v_mov_b32_e32 v{vLB}, 0
    """)
    e(f"""
    v_bfe_u32 v4, v{L}, 3, 1
    v_bfe_u32 v5, v{L}, 4, 1
    v_lshlrev_b32_e32 v4, 13, v4
    v_lshl_add_u32 v4, v5, 12, v4
    v_and_b32_e32 v5, 7, v{L}
    v_lshl_add_u32 v4, v5, 7, v4
    v_bfe_u32 v5, v{L}, 1, 3
    v_lshrrev_b32_e32 v6, 5, v{L}
    v_xor_b32_e32 v5, v5, v6
    v_lshl_add_u32 v{vKA}, v5, 4, v4
    v_xor_b32_e32 v{vKA+1}, 32, v{vKA}
    v_xor_b32_e32 v{vKA+2}, 64, v{vKA}
    v_xor_b32_e32 v{vKA+3}, 0x60, v{vKA}
    """)
    e(f"""
    v_bfe_u32 v4, v{L}, 2, 2
    v_lshl_add_u32 v4, v6, 2, v4
    v_lshlrev_b32_e32 v4, 7, v4
    v_bfe_u32 v5, v{L}, 3, 1
    v_lshl_add_u32 v4, v5, 6, v4
    v_bfe_u32 v5, v{L}, 4, 1
    v_lshl_add_u32 v4, v5, 5, v4
    v_and_b32_e32 v5, 1, v{L}
    v_lshl_add_u32 v4, v5, 4, v4
    v_bfe_u32 v5, v{L}, 1, 1
    v_lshl_add_u32 v4, v5, 3, v4
    v_add_u32_e32 v{vVA}, 0x4000, v4
    v_xor_b32_e32 v{vVA+1}, 64, v{vVA}
    """)
    for i in range(4):
        e(f"v_add_u32_e32 v{vT+i}, s{sQA}, v{vKA+i}\nv_add_u32_e32 v{vT+4+i}, s{sQB}, v{vKA+i}")
    for i in range(256): e(f"v_accvgpr_write_b32 a{i}, 0")
    e(f"s_cmp_eq_u32 s{sTY}, 1\ns_cbranch_scc1 L_w1\ns_waitcnt vmcnt(16)\ns_branch L_w2\nL_w1:\ns_waitcnt vmcnt(8)\nL_w2:\ns_barrier")
    for ks in range(16):
        e(f"ds_read_b128 {vr(QB+4*ks,4)}, v{vT+4+(ks&3)} offset:{(ks>>2)*1024}")
    for ks in range(16):
        e(f"ds_read_b128 {vr(QA+4*ks,4)}, v{vT+(ks&3)} offset:{(ks>>2)*1024}")
    e("s_waitcnt lgkmcnt(0)\ns_barrier")
    stamp_at(1)
    e(f"s_cmp_eq_u32 s{sTY}, 1\ns_cbranch_scc1 L_first1")
    first_hs(0)
    e("L_first1:")
    first_hs(1)

def build():
    e(f"{KN}:")
    prologue()
    e(".p2align 6")
    e("L_hsE:"); hsE()
    e("L_hsO:"); hsO()
    tail(0); tail(1)
    slow("E", "E", "L_retE"); slow("O", "O", "L_retO")
    slow("E", "T0", "L_retT0"); slow("O", "T1", "L_retT1")
    rescale("L_rescA", OA); rescale("L_rescB", OB)
    if cfg.stamps:
        e("L_dump:\ns_waitcnt lgkmcnt(0)")
        e(f"""
        s_mov_b32 s{SD}, s{sPTR+10}
        s_mov_b32 s{SD+1}, s{sPTR+11}
        s_mov_b32 s{SD+2}, 0x100000
        s_mov_b32 s{SD+3}, 0x20000
        s_lshl_b32 s3, s2, 2
        s_add_u32 s3, s3, s{sW}
        s_lshl_b32 s3, s3, 7
        v_mov_b32_e32 v0, s3
        s_getreg_b32 s{sST+18}, hwreg(HW_REG_XCC_ID)
        s_getreg_b32 s{sST+19}, hwreg(HW_REG_HW_ID)
        """)
        for i in range(20):
            e(f"v_mov_b32_e32 v1, s{sST+i}\nbuffer_store_dword v1, v0, {sr(SD,4)}, 0 offen offset:{4*i}\ns_nop 1")
    if cfg.diag >= 0:
        a, b = (cfg.diag % 100) // 10, cfg.diag % 10
        e(f"L_diag:\ns_sub_u32 s3, s{sST+2*b}, s{sST+2*a}")
        if cfg.diag >= 100: e("s_mul_hi_u32 s3, s3, 0x19999999")
        e(f"s_min_u32 s3, s3, 20000\ns_add_u32 s3, s3, 8000\nL_spin:\ns_memrealtime {sr(sST+14,2)}\ns_waitcnt lgkmcnt(0)\ns_sub_u32 s{sTMP}, s{sST+14}, s{sST+16}\ns_cmp_lt_u32 s{sTMP}, s3\ns_cbranch_scc1 L_spin")
    e("L_exit:\ns_endpgm")

HEAD = open("standalone__mha_softmax__near_ridge.s.ref").read().split("\n")[:9]
def main():
    ap = argparse.ArgumentParser()
    ap.add_argument("-o", default="standalone__mha_softmax__near_ridge.s")
    ap.add_argument("opts", nargs="*")
    a = ap.parse_args()
    for o in a.opts:
        k, v = o.split("=")
        assert hasattr(cfg, k), k
        setattr(cfg, k, type(getattr(cfg, k))(eval(v)))
    build()
    txt = "\n".join(HEAD) + "\n; @launch grid=(256,1,1) block=(256,1,1) lds=163840\n"
    txt += f'.amdgcn_target "amdgcn-amd-amdhsa--gfx950"\n.text\n.globl {KN}\n.p2align 8\n.type {KN},@function\n'
    txt += "\n".join(l if l.endswith(":") or l.startswith(".") else "    " + l for l in out) + "\n"
    txt += f""".section .rodata,"a"
.p2align 6
.amdhsa_kernel {KN}
  .amdhsa_next_free_vgpr 512
  .amdhsa_next_free_sgpr 102
  .amdhsa_accum_offset 256
  .amdhsa_group_segment_fixed_size 0
  .amdhsa_kernarg_size 48
  .amdhsa_user_sgpr_count 2
  .amdhsa_user_sgpr_kernarg_segment_ptr 1
  .amdhsa_system_sgpr_workgroup_id_x 1
.end_amdhsa_kernel
"""
    open(a.o, "w").write(txt)
main()
```

```python
import sys, re, struct, argparse

KN = "standalone__mha_softmax__near_ridge_kernel"
BIAS = 4096
QHEAD = 368 * 512
KHEAD = 512 * 512

def f2u(x): return struct.unpack("<I", struct.pack("<f", x))[0]

SQ, SK, SV, SO = 4, 8, 12, 16
SOFF = 20
sCNT, sCUR, sDELTA, sDMAK, sDMAV = 28, 29, 30, 31, 32
sC, sTE, sTO, sFLA, sFLB = 33, 34, 35, 36, 37
sW, sWK, sWV, sNREC = 38, 39, 40, 41
sPOS, sNEG, sT = 42, 43, 44
sTMP = 45
sPTR = 48
sRET = 60
sP, sTY, sROW0 = 62, 63, 64
SD = 96
sCY, sRT, sSTT = 70, 80, 90

QA, QB = 0, 64
SA2, SB, S1 = 128, 144, 160
FR = 176
vKA = 208
vVA = 212
vKD, vVD = 214, 215
vNMA, vNMB, vLA, vLB = 216, 217, 218, 219
vMXA, vMXB, vMX = 220, 221, 222
vT = 224
vLANE = 240
OA, OB = 0, 128

def vr(b, n): return f"v[{b}:{b+n-1}]"
def ar(b, n): return f"a[{b}:{b+n-1}]"
def sr(b, n): return f"s[{b}:{b+n-1}]"
def frag(n): return FR + 4 * (n % 8)

class Cfg:
    stamps = False
    T = 8.0
    waitlag = 3
    LA_E = 3
    LA_O = 4
    preE = 0
    preO = 8
    q_nt = False
    kv_nt = False
    o_nt = False
    diagwg = -1
    diagmul = 1
    diagbase = 5000
    diag = -1

cfg = Cfg()
out = []
def e(s):
    for l in s.split("\n"):
        l = l.strip()
        if l: out.append(l)

def mfma_qk(S, Q, ks, n):
    c = "0" if ks == 0 else vr(S, 16)
    return f"v_mfma_f32_32x32x16_bf16 {vr(S,16)}, {vr(frag(n),4)}, {vr(Q+4*ks,4)}, {c}"
def mfma_pv(O, S, m, db, n):
    return f"v_mfma_f32_32x32x16_bf16 {ar(O+16*db,16)}, {vr(frag(n),4)}, {vr(S+8*m,4)}, {ar(O+16*db,16)}"
def rd_k(ks, n):
    return [f"ds_read_b128 {vr(frag(n),4)}, v{vKA+(ks&3)} offset:{(ks>>2)*1024}"]
def rd_v(i, n):
    m, db = i >> 3, i & 7
    return [f"ds_read_b64_tr_b16 {vr(frag(n)+2*g,2)}, v{vVA+(db&1)} offset:{(g*8+m*4+(db>>1))*1024}" for g in (0, 1)]
def dma8(srd, va, base, nt=False, add=0):
    r = []
    for g in (0, 1):
        off = add + 4096 * g
        r.append(f"s_add_u32 m0, s{base}, {off}" if off else f"s_mov_b32 m0, s{base}")
        for lc in range(4):
            r.append(f"buffer_load_dwordx4 v{va}, {sr(srd,4)}, s{SOFF+4*g+lc} offen offset:{1024*lc}{' nt' if nt else ''} lds")
    return r
def emit_dma8(srd, va, base, nt=False, add=0):
    for x in dma8(srd, va, base, nt, add):
        e(x)
        if "m0" in x: e("s_nop 0")

def max_chain(S, dst):
    r = [f"v_max3_f32 v{dst}, v{S}, v{S+1}, v{S+2}"]
    for i in range(3, 15, 2): r.append(f"v_max3_f32 v{dst}, v{dst}, v{S+i}, v{S+i+1}")
    r.append(f"v_max_f32_e32 v{dst}, v{dst}, v{S+15}")
    return r
def fma1(S, i, nm): return f"v_fma_f32 v{S+i}, v{S+i}, s{sC}, v{nm}"
def ilv(*ls):
    r = []
    for t in range(max(map(len, ls))):
        for l in ls:
            if t < len(l): r.append(l[t])
    return r
def pre_check_single():
    return max_chain(S1, vMXA) + [f"v_fma_f32 v{vMXA}, v{vMXA}, s{sC}, v{vNMA}"] + \
        [fma1(S1, i, vNMA) for i in range(cfg.preE)] + [f"v_cmp_lt_f32_e32 vcc, s{sTE}, v{vMXA}"]
def pre_check_double():
    return ilv(max_chain(SA2, vMXA), max_chain(SB, vMXB)) + \
        [f"v_fma_f32 v{vMXA}, v{vMXA}, s{sC}, v{vNMA}", f"v_fma_f32 v{vMXB}, v{vMXB}, s{sC}, v{vNMB}"] + \
        ilv([fma1(SA2, i, vNMA) for i in range(cfg.preO)], [fma1(SB, i, vNMB) for i in range(cfg.preO)]) + \
        [f"v_max_f32_e32 v{vMX}, v{vMXA}, v{vMXB}", f"v_cmp_lt_f32_e32 vcc, s{sTO}, v{vMX}"]
def soft_half(S, m, nm, l, pre):
    b = 8 * m
    r = []
    for t in range(-1, 10):
        i = b + t + 1
        if 0 <= t + 1 < 8 and i >= pre: r.append(fma1(S, i, nm))
        if 0 <= t < 8: r.append(f"v_exp_f32_e32 v{S+b+t}, v{S+b+t}")
        if 0 <= t - 1 < 8: r.append(f"v_add_f32_e32 v{l}, v{l}, v{S+b+t-1}")
        if t - 1 >= 1 and (t - 1) % 2 == 1 and t - 1 < 8:
            j = (t - 1) // 2
            r.append(f"v_cvt_pk_bf16_f32 v{S+b+j}, v{S+b+2*j}, v{S+b+2*j+1}")
    return r

def cost(s): return 2 if s.startswith("v_exp") else 1

class Sched:
    def __init__(self, mf, pending):
        self.mf = mf
        self.rd = {}
        self.fill = {}
        self.head = {}
        self.pending = pending
    def reads(self, items):
        for g, n, t in items: self.rd.setdefault(g, []).append((n, t))
    def put(self, g, t): self.fill.setdefault(g, []).append(t)
    def puthead(self, g, t): self.head.setdefault(g, []).append(t)
    def load(self, g):
        return len(self.rd.get(g, [])) + sum(map(cost, self.fill.get(g, []))) + len(self.head.get(g, [])) + self.waits.get(g, 0)
    def plan_waits(self):
        q = list(self.pending)
        q = [(n, -1 - a) for n, a in q]
        done = 0
        w = {}
        for i, (t, n) in enumerate(self.mf):
            for (fn, _) in self.rd.get(i - 1, []): q.append((fn, i - 1))
            if n is None: continue
            last = max(k for k, (fn, _) in enumerate(q) if fn == n) + 1
            if last > done:
                k = last
                while k < len(q) and q[k][1] <= i - 1 - cfg.waitlag: k += 1
                N = min(15, len(q) - k)
                done = len(q) - N
                w[i] = N
        self.waitN = w
        self.waits = {i - 1: 1 for i in w}
    def spread(self, items, g0, g1, cap=6):
        tot = sum(map(cost, items)) + sum(self.load(g) for g in range(g0, g1 + 1))
        lvl = tot / (g1 - g0 + 1)
        g = g0; acc = 0.0; used = 0
        base = {x: self.load(x) for x in range(g0, g1 + 1)}
        cum_target = 0.0; cum = 0
        it = list(items)
        for g in range(g0, g1 + 1):
            cum_target += lvl; cum += base[g]
            while it and (cum + cost(it[0]) / 2 <= cum_target + 1e-9 or g == g1):
                x = it.pop(0); self.put(g, x); cum += cost(x)
    def emit(self, name):
        loads = []
        def gap(g):
            for t in self.head.get(g, []): e(t)
            for _, t in self.rd.get(g, []): e(t)
            for t in self.fill.get(g, []): e(t)
        gap(-1)
        for i, (t, n) in enumerate(self.mf):
            if i in self.waitN: e(f"s_waitcnt lgkmcnt({self.waitN[i]})")
            e(t)
            gap(i)
            loads.append(self.load(i))
        print(f"{name}: gap loads {' '.join(map(str, loads))}  total {sum(loads)} pre {self.load(-1)}", file=sys.stderr)

def adv_salu(kind):
    r = [f"s_add_u32 s{sDMAV}, s{sCUR}, s{sWV}" if kind == "E" else f"s_add_u32 s{sDMAK}, s{sCUR}, s{sWK}"]
    r += [f"s_add_u32 s{sCUR}, s{sCUR}, s{sPOS}",
          f"s_cmp_eq_u32 s{sCUR}, 0x28000\ns_cselect_b32 s{sDELTA}, s{sNEG}, s{sPOS}\ns_cselect_b32 s{sCUR}, 0, s{sCUR}"]
    return r
def k_adv(): return [f"v_add_u32_e32 v{vKA+i}, s{sDELTA}, v{vKA+i}" for i in range(4)]
def v_adv(): return [f"v_add_u32_e32 v{vVA+i}, s{sDELTA}, v{vVA+i}" for i in range(2)]
def dma_stream():
    r = [f"s_cmp_ge_u32 s{sCNT}, 2\ns_cselect_b32 s{SV+2}, s{sNREC}, 0",
         f"s_cmp_ge_u32 s{sCNT}, 4\ns_cselect_b32 s{SK+2}, s{sNREC}, 0"]
    r += dma8(SV, vVD, sDMAV, cfg.kv_nt) + [f"v_add_u32_e32 v{vVD}, 0x8000, v{vVD}"]
    r += dma8(SK, vKD, sDMAK, cfg.kv_nt) + [f"v_add_u32_e32 v{vKD}, 0x8000, v{vKD}"]
    return r

_oldcost = cost
def cost(s): return sum(2 if x.startswith("v_exp") else 1 for x in s.split("\n"))

def place_dma(S, g0, step=2):
    g = g0
    for x in dma_stream():
        if x.startswith("buffer_load"):
            S.put(g, x); g += step
        elif "m0" in x: S.put(g - 1, x)
        elif x.startswith("s_cmp"): S.put(g0 - 1, x)
        else: S.put(g - step, x)
    return g

def hsE():
    mf = []
    for ks in range(16):
        mf.append((mfma_qk(SA2, QA, ks, ks), ks)); mf.append((mfma_qk(SB, QB, ks, ks), None))
    for i in range(16): mf.append((mfma_pv(OA, S1, i >> 3, i & 7, 16 + i), 16 + i))
    S = Sched(mf, [(n, cfg.LA_E - n + 1) for n in range(cfg.LA_E)])
    rd = []
    g = 0
    for n in range(cfg.LA_E, 16):
        g = max(g, 2 * n - 15); rd.append((g, n, rd_k(n, n)[0])); g += 1
    for i in range(8):
        a, b = rd_v(i, 16 + i); rd.append((17 + 2 * i, 16 + i, a)); rd.append((18 + 2 * i, 16 + i, b))
    k = 0
    for i in range(8, 16):
        for x in rd_v(i, 16 + i):
            rd.append((33 + (k * 10) // 16, 16 + i, x)); k += 1
    for n in range(cfg.LA_O): rd.append((47 - cfg.LA_O + n, 32 + n, rd_k(n, 32 + n)[0]))
    S.reads(rd); S.plan_waits()
    S.puthead(0, "s_cbranch_vccnz L_slowE\nL_retE:")
    S.puthead(47 - cfg.LA_O, "s_waitcnt vmcnt(24)"); S.puthead(47 - cfg.LA_O, "s_barrier")
    for x in v_adv(): S.put(0, x)
    place_dma(S, 2, 2) if False else place_dma_e(S)
    S.spread(soft_half(S1, 0, vNMA, vLA, cfg.preE) + soft_half(S1, 1, vNMA, vLA, cfg.preE), 0, 30)
    S.put(46, f"s_sub_u32 s{sCNT}, s{sCNT}, 1")
    S.spread(pre_check_double(), 34, 47)
    S.put(47, "s_cbranch_scc1 L_tail1")
    S.emit("hsE")
def place_dma_e(S):
    g = place_dma(S, 1, 2) if False else None
    st = dma_stream()
    S.put(0, st[0]); S.put(1, st[1])
    g = 2
    for x in st[2:]:
        if x.startswith("buffer_load"): S.put(g, x); g += 2
        elif "m0" in x: S.put(g - 1, x)
        else: S.put(g - 1, x)
    a = adv_salu("E")
    S.put(19, a[0]); S.put(21, a[1]); S.put(23, a[2])
    for i, x in enumerate(k_adv()): S.put(27 + 2 * (i // 2) + 0, x)

def hsO():
    mf = []
    for ks in range(16): mf.append((mfma_qk(S1, QA, ks, ks), ks))
    for i in range(16):
        mf.append((mfma_pv(OA, SA2, i >> 3, i & 7, 16 + i), 16 + i)); mf.append((mfma_pv(OB, SB, i >> 3, i & 7, 16 + i), None))
    S = Sched(mf, [(n, cfg.LA_O - n) for n in range(cfg.LA_O)])
    rd = []
    for n in range(cfg.LA_O, 16): rd.append((max(0, n - cfg.LA_O - 1), n, rd_k(n, n)[0]))
    for i in range(16):
        a, b = rd_v(i, 16 + i); rd.append((11 + 2 * i, 16 + i, a)); rd.append((12 + 2 * i, 16 + i, b))
    for n in range(cfg.LA_E): rd.append((46 - cfg.LA_E + n, 32 + n, rd_k(n, 32 + n)[0]))
    S.reads(rd); S.plan_waits()
    S.puthead(0, "s_cbranch_vccnz L_slowO\nL_retO:")
    S.puthead(46 - cfg.LA_E, "s_waitcnt vmcnt(16)"); S.puthead(46 - cfg.LA_E, "s_barrier")
    for i, x in enumerate(v_adv()): S.put(8 + i, x)
    S.spread(ilv(soft_half(SA2, 0, vNMA, vLA, cfg.preO), soft_half(SB, 0, vNMB, vLB, cfg.preO)), 0, 14)
    S.spread(ilv(soft_half(SA2, 1, vNMA, vLA, cfg.preO), soft_half(SB, 1, vNMB, vLB, cfg.preO)), 15, 30)
    a = adv_salu("O")
    S.put(32, a[0]); S.put(33, a[1]); S.put(34, a[2])
    for i, x in enumerate(k_adv()): S.put(36 + i, x)
    S.put(46, f"s_sub_u32 s{sCNT}, s{sCNT}, 1")
    S.spread(pre_check_single(), 32, 47)
    S.put(47, "s_cbranch_scc0 L_hsE")
    S.emit("hsO")

def first_hs(ty):
    mf = []
    for ks in range(16):
        if ty == 0:
            mf.append((mfma_qk(SA2, QA, ks, ks), ks)); mf.append((mfma_qk(SB, QB, ks, ks), None))
        else: mf.append((mfma_qk(S1, QA, ks, ks), ks))
    S = Sched(mf, [])
    st = 2 if ty == 0 else 1
    rd = [(-1, n, rd_k(n, n)[0]) for n in range(8)]
    for n in range(8, 16): rd.append((st * (n - 8) + st - 1, n, rd_k(n, n)[0]))
    S.reads(rd); S.plan_waits()
    d = dma8(SV, vVD, sDMAV, cfg.kv_nt) + [f"v_add_u32_e32 v{vVD}, 0x8000, v{vVD}"] + \
        dma8(SK, vKD, sDMAK, cfg.kv_nt) + [f"v_add_u32_e32 v{vKD}, 0x8000, v{vKD}"]
    g = 0
    for x in d:
        if x.startswith("buffer_load"): S.put(g, x); g += st
        else: S.put(g - 1, x)
    S.emit(f"first{ty}")
    if ty == 1:
        e(f"s_add_u32 s{sDMAV}, s{sWV}, {4*32768}")
    for x in adv_salu("E" if ty == 0 else "O"): e(x)
    for x in k_adv(): e(x)
    e("s_nop 7")
    e(f"s_waitcnt vmcnt({24 if ty == 0 else 16})\ns_barrier")
    for n in range(cfg.LA_O if ty == 0 else cfg.LA_E): e(rd_k(n, n)[0])
    for x in (pre_check_double() if ty == 0 else pre_check_single()): e(x)
    e(f"s_sub_u32 s{sCNT}, s{sCNT}, 1")
    e(f"s_branch {'L_hsO' if ty == 0 else 'L_hsE'}")

def slow_unit(tag, S, pre, mx, nm, l, fl, resc):
    e(f"s_cmp_lg_u32 s{fl}, 0")
    e(f"s_cbranch_scc1 L_do{tag}")
    e(f"v_cmp_lt_f32_e32 vcc, s{sT}, v{mx}")
    e(f"s_cbranch_vccz L_skip{tag}")
    e(f"L_do{tag}:")
    e(f"v_mov_b32_e32 v{vT}, v{mx}\ns_nop 1\nv_permlane32_swap_b32_e32 v{mx}, v{vT}\ns_nop 1")
    e(f"v_max3_f32 v{mx}, v{mx}, v{vT}, s{fl}")
    e(f"v_sub_f32_e32 v{nm}, v{nm}, v{mx}")
    for i in range(pre): e(f"v_sub_f32_e32 v{S+i}, v{S+i}, v{mx}")
    e(f"s_cmp_lg_u32 s{fl}, 0")
    e(f"s_mov_b32 s{fl}, 0")
    e(f"s_cbranch_scc1 L_skip{tag}")
    e(f"v_exp_f32_e64 v{vT}, -v{mx}\ns_nop 0")
    e(f"v_mul_f32_e32 v{l}, v{l}, v{vT}")
    e(f"s_call_b64 {sr(sRET,2)}, {resc}")
    e(f"L_skip{tag}:")
def slow(kind, tag, ret):
    e(f"L_slow{tag}:")
    if kind == "E":
        slow_unit(tag + "a", S1, cfg.preE, vMXA, vNMA, vLA, sFLA, "L_rescA")
        e(f"s_mov_b32 s{sTE}, s{sT}")
    else:
        slow_unit(tag + "a", SA2, cfg.preO, vMXA, vNMA, vLA, sFLA, "L_rescA")
        slow_unit(tag + "b", SB, cfg.preO, vMXB, vNMB, vLB, sFLB, "L_rescB")
        e(f"s_mov_b32 s{sTO}, s{sT}")
    e(f"s_branch {ret}")
def rescale(name, O):
    e(f"{name}:\ns_nop 15")
    for i in range(0, 128, 4):
        for j in range(4): e(f"v_accvgpr_read_b32 v{vT+1+j}, a{O+i+j}")
        for j in range(4): e(f"v_mul_f32_e32 v{vT+1+j}, v{vT+1+j}, v{vT}")
        for j in range(4): e(f"v_accvgpr_write_b32 a{O+i+j}, v{vT+1+j}")
    e(f"s_nop 1\ns_setpc_b64 {sr(sRET,2)}")

vWA = 0
vRA = 4
vGA = 5
vXW, vXR = 9, 10
vF0, vF1 = 12, 14
vE = 16
ML_OFF = 147456

def out_tile(getregs, dbs, lc0):
    nb = 0
    for k in range(0, len(dbs), 2):
        lcs = k // 2
        for db in dbs[k:k + 2]:
            w = vE + 32 * (nb % 2); nb += 1
            getregs(db, w)
            for j in range(8): e(f"v_cvt_pk_bf16_f32 v{w+16+j}, v{w+2*j}, v{w+2*j+1}")
            for g1 in (0, 1):
                e(f"ds_write_b128 v{vWA+(db&1)*2+g1}, {vr(w+16+4*g1,4)} offset:{lcs*4096}")
        r = 96 + 16 * (lcs % 2)
        e("s_waitcnt lgkmcnt(0)")
        for rb in range(4): e(f"ds_read_b128 {vr(r+4*rb,4)}, v{vRA} offset:{lcs*4096+rb*1024}")
        for rb in range(4):
            e(f"s_waitcnt lgkmcnt({3-rb})")
            e(f"buffer_store_dwordx4 {vr(r+4*rb,4)}, v{vGA+rb}, {sr(SO,4)}, 0 offen offset:{(lc0+lcs)*128}{' nt' if cfg.o_nt else ''}")

def tail(ty):
    e(f"L_tail{ty}:")
    stamp_at(6)
    e("s_waitcnt vmcnt(0)\ns_barrier")
    for x in v_adv(): e(x)
    e(f"s_cbranch_vccnz L_slowT{ty}\nL_retT{ty}:")
    mf = []
    for i in range(16):
        if ty == 0: mf.append((mfma_pv(OA, S1, i >> 3, i & 7, i), i))
        else:
            mf.append((mfma_pv(OA, SA2, i >> 3, i & 7, i), i)); mf.append((mfma_pv(OB, SB, i >> 3, i & 7, i), None))
    S = Sched(mf, [])
    st = 1 if ty == 0 else 2
    rd = []
    for i in range(16):
        for x in rd_v(i, i): rd.append((-1 if i < 7 else st * (i - 7) + st - 1, i, x))
    S.reads(rd); S.plan_waits()
    if ty == 0:
        for x in soft_half(S1, 0, vNMA, vLA, cfg.preE): S.put(-1, x)
        S.put(-1, "s_nop 0")
        S.spread(soft_half(S1, 1, vNMA, vLA, cfg.preE), 0, 6)
    else:
        for x in ilv(soft_half(SA2, 0, vNMA, vLA, cfg.preO), soft_half(SB, 0, vNMB, vLB, cfg.preO)): S.put(-1, x)
        S.put(-1, "s_nop 0")
        S.spread(ilv(soft_half(SA2, 1, vNMA, vLA, cfg.preO), soft_half(SB, 1, vNMB, vLB, cfg.preO)), 0, 14)
    S.emit(f"tail{ty}")
    stamp_at(7)
    L = vLANE
    e(f"""
    s_lshl_b32 s{sTMP}, s{sW}, 14
    s_add_u32 s{sTMP}, s{sTMP}, 0x10000
    v_and_b32_e32 v{vE}, 7, v{L}
    v_lshrrev_b32_e32 v{vE+1}, 5, v{L}
    v_xor_b32_e32 v{vE+1}, v{vE+1}, v{vE}
    v_and_b32_e32 v{vE+2}, 31, v{L}
    v_lshlrev_b32_e32 v{vE+2}, 7, v{vE+2}
    v_lshl_add_u32 v{vE+2}, v{vE+1}, 4, v{vE+2}
    v_add_u32_e32 v{vWA}, s{sTMP}, v{vE+2}
    v_xor_b32_e32 v{vWA+1}, 32, v{vWA}
    v_xor_b32_e32 v{vWA+2}, 64, v{vWA}
    v_xor_b32_e32 v{vWA+3}, 0x60, v{vWA}
    v_lshrrev_b32_e32 v{vE+1}, 3, v{L}
    v_xor_b32_e32 v{vE+2}, v{vE+1}, v{vE}
    v_lshlrev_b32_e32 v{vE+2}, 4, v{vE+2}
    v_lshl_add_u32 v{vE+2}, v{vE+1}, 7, v{vE+2}
    v_add_u32_e32 v{vRA}, s{sTMP}, v{vE+2}
    v_lshlrev_b32_e32 v{vE}, 4, v{vE}
    v_lshl_add_u32 v{vE}, v{vE+1}, 9, v{vE}
    s_lshl_b32 s{sTMP}, s{sW}, 5
    s_add_u32 s{sTMP}, s{sTMP}, s{sROW0}
    s_lshl_b32 s{sTMP}, s{sTMP}, 9
    v_add_u32_e32 v{vGA}, s{sTMP}, v{vE}
    v_add_u32_e32 v{vGA+1}, 0x1000, v{vGA}
    v_add_u32_e32 v{vGA+2}, 0x2000, v{vGA}
    v_add_u32_e32 v{vGA+3}, 0x3000, v{vGA}
    s_lshl_b32 s{sTMP}, s{sW}, 14
    s_cmp_eq_u32 s{sW}, 3
    s_cselect_b32 s{sTMP}, 0x20000, s{sTMP}
    s_xor_b32 s{sTMP+1}, s{sW}, 1
    s_lshl_b32 s{sTMP+2}, s{sTMP+1}, 14
    s_cmp_eq_u32 s{sTMP+1}, 3
    s_cselect_b32 s{sTMP+2}, 0x20000, s{sTMP+2}
    v_lshlrev_b32_e32 v{vE}, 4, v{L}
    v_add_u32_e32 v{vXW}, s{sTMP}, v{vE}
    v_add_u32_e32 v{vXR}, s{sTMP+2}, v{vE}
    """)
    for l in (vLA, vLB):
        e(f"v_mov_b32_e32 v{vT}, v{l}\ns_nop 1\nv_permlane32_swap_b32_e32 v{l}, v{vT}\ns_nop 1\nv_add_f32_e32 v{l}, v{l}, v{vT}")
    e(f"""
    s_lshl_b32 s{sTMP}, s{sW}, 9
    s_add_u32 s{sTMP}, s{sTMP}, {ML_OFF}
    v_lshlrev_b32_e32 v{vE}, 3, v{L}
    v_add_u32_e32 v{vE}, s{sTMP}, v{vE}
    v_xor_b32_e32 v11, 0x200, v{vE}
    v_mov_b32_e32 v{vE+2}, v{vNMB}
    v_mov_b32_e32 v{vE+3}, v{vLB}
    ds_write_b64 v{vE}, {vr(vE+2,2)}
    """)
    snd = OB + 64 * (1 - ty)
    for i in range(16): e(f"ds_write_b128 v{vXW}, {ar(snd+4*i,4)} offset:{1024*i}")
    e(f"v_rcp_f32_e32 v{vF0}, v{vLA}\ns_nop 0")
    def getA(db, w):
        for j in range(16): e(f"v_accvgpr_read_b32 v{w+j}, a{OA+16*db+j}")
        for j in range(0, 16, 2): e(f"v_pk_mul_f32 {vr(w+j,2)}, {vr(w+j,2)}, {vr(vF0,2)} op_sel_hi:[1,0]")
    out_tile(getA, list(range(8)), 0)
    stamp_at(8)
    e("s_waitcnt lgkmcnt(0)\ns_barrier")
    e(f"ds_read_b64 {vr(vE,2)}, v11")
    X = 128
    for i in range(16): e(f"ds_read_b128 {vr(X+4*i,4)}, v{vXR} offset:{1024*i}")
    e(f"""
    s_lshl_b32 s{sTMP}, s{sP}, 5
    s_lshl_b32 s{sTMP+1}, s{sW}, 5
    s_sub_u32 s{sTMP}, s{sTMP}, s{sTMP+1}
    s_add_u32 s{sTMP}, s{sTMP}, 128
    s_lshl_b32 s{sTMP}, s{sTMP}, 9
    """)
    for rb in range(4): e(f"v_add_u32_e32 v{vGA+rb}, s{sTMP}, v{vGA+rb}")
    e(f"""
    s_waitcnt lgkmcnt(15)
    v_min_f32_e32 v{vE+2}, v{vE}, v{vNMB}
    v_sub_f32_e32 v{vF0}, v{vE+2}, v{vNMB}
    v_sub_f32_e32 v{vF1}, v{vE+2}, v{vE}
    v_exp_f32_e32 v{vF0}, v{vF0}
    v_exp_f32_e32 v{vF1}, v{vF1}
    s_nop 0
    v_mul_f32_e32 v{vE+2}, v{vF0}, v{vLB}
    v_fmac_f32_e32 v{vE+2}, v{vF1}, v{vE+1}
    v_rcp_f32_e32 v{vE+2}, v{vE+2}
    s_nop 0
    v_mul_f32_e32 v{vF0}, v{vF0}, v{vE+2}
    v_mul_f32_e32 v{vF1}, v{vF1}, v{vE+2}
    s_waitcnt lgkmcnt(0)
    """)
    def getB(db, w):
        x = X + 16 * (db - 4 * ty)
        for j in range(16): e(f"v_accvgpr_read_b32 v{w+j}, a{OB+16*db+j}")
        for j in range(0, 16, 2): e(f"v_pk_mul_f32 {vr(w+j,2)}, {vr(w+j,2)}, {vr(vF0,2)} op_sel_hi:[1,0]")
        for j in range(0, 16, 2): e(f"v_pk_fma_f32 {vr(w+j,2)}, {vr(x+j,2)}, {vr(vF1,2)}, {vr(w+j,2)} op_sel_hi:[1,0,1]")
    out_tile(getB, list(range(4 * ty, 4 * ty + 4)), 2 * ty)
    if cfg.stamps:
        e("s_waitcnt vmcnt(0)")
        stamp_at(9)
        e("s_branch L_dump")
    elif cfg.diag >= 0:
        e("s_waitcnt vmcnt(0)")
        stamp_at(9)
        e("s_branch L_diag")
    else:
        e("s_endpgm")

def stamp_at(i):
    if cfg.stamps or (cfg.diag >= 0 and i in (0, (cfg.diag % 100) // 10, cfg.diag % 10)):
        e(f"s_memtime {sr(sSTT,2)}\ns_memrealtime {sr(sSTT+2,2)}\ns_waitcnt lgkmcnt(0)\ns_mov_b32 s{sCY+i}, s{sSTT}\ns_mov_b32 s{sRT+i}, s{sSTT+2}")

def prologue():
    L = vLANE
    stamp_at(0)
    e(f"""
    s_cmp_ge_u32 s2, 256
    s_cbranch_scc1 L_exit
    s_load_dwordx8 {sr(sPTR,8)}, s[0:1], 0
    s_load_dwordx4 {sr(sPTR+8,4)}, s[0:1], 32
    v_lshrrev_b32_e32 v1, 6, v0
    v_and_b32_e32 v{L}, 63, v0
    v_readfirstlane_b32 s{sW}, v1
    s_lshr_b32 s3, s2, 4
    s_lshl_b32 s3, s3, 3
    s_and_b32 s{sTMP}, s2, 7
    s_add_u32 s3, s3, s{sTMP}
    s_bfe_u32 s{sROW0}, s2, 0x10003
    s_mul_i32 s{sROW0}, s{sROW0}, 192
    s_and_b32 s{sTY}, s{sW}, 1
    s_lshr_b32 s{sP}, s{sW}, 1
    s_lshl_b32 s{sWK}, s{sP}, 13
    s_add_u32 s{sWV}, s{sWK}, 0x4000
    s_mul_i32 s{sTMP}, s3, {QHEAD}
    s_lshl_b32 s{sTMP+1}, s3, 18
    """)
    for g in (0, 1):
        for lc in range(4): e(f"s_mov_b32 s{SOFF+4*g+lc}, {BIAS + g*8192 - lc*896}")
    e(f"""
    v_lshrrev_b32_e32 v4, 3, v{L}
    v_and_b32_e32 v5, 7, v{L}
    v_lshrrev_b32_e32 v6, 1, v4
    v_xor_b32_e32 v2, v5, v6
    v_lshlrev_b32_e32 v2, 4, v2
    v_lshl_add_u32 v2, v4, 9, v2
    v_and_b32_e32 v6, 1, v6
    v_lshlrev_b32_e32 v6, 2, v6
    v_xor_b32_e32 v3, v5, v6
    v_lshlrev_b32_e32 v3, 4, v3
    v_lshl_add_u32 v3, v4, 9, v3
    s_mul_i32 s{sTMP+2}, s{sP}, 0x1040
    v_xor_b32_e32 v{vKD}, s{sTMP+2}, v2
    s_lshl_b32 s{sTMP+2}, s{sP}, 12
    v_add_u32_e32 v{vVD}, s{sTMP+2}, v3
    s_lshl_b32 s{sTMP+2}, s{sTY}, 14
    v_add_u32_e32 v{vKD}, s{sTMP+2}, v{vKD}
    v_add_u32_e32 v{vVD}, s{sTMP+2}, v{vVD}
    s_mul_i32 s{sTMP+2}, s{sTY}, 0x1040
    v_xor_b32_e32 v7, s{sTMP+2}, v2
    s_lshl_b32 s{sTMP+2}, s{sP}, 5
    s_add_u32 s{sTMP+2}, s{sTMP+2}, s{sROW0}
    s_add_u32 s{sTMP+2}, s{sTMP+2}, 128
    s_lshl_b32 s{sTMP+2}, s{sTMP+2}, 9
    v_add_u32_e32 v7, s{sTMP+2}, v7
    s_lshl_b32 s{sTMP+2}, s{sW}, 5
    s_add_u32 s{sTMP+2}, s{sTMP+2}, s{sROW0}
    s_lshl_b32 s{sTMP+2}, s{sTMP+2}, 9
    v_add_u32_e32 v8, s{sTMP+2}, v2
    v_xor_b32_e32 v9, 0x1040, v8
    s_mov_b32 s{sNREC}, {KHEAD + BIAS}
    s_waitcnt lgkmcnt(0)
    """)
    stamp_at(1)
    def srd(d, p, off, bias, n):
        e(f"s_add_u32 s{d}, s{p}, s{off}\ns_addc_u32 s{d+1}, s{p+1}, 0")
        if bias: e(f"s_sub_u32 s{d}, s{d}, {bias}\ns_subb_u32 s{d+1}, s{d+1}, 0")
        e(f"s_mov_b32 s{d+2}, {n}\ns_mov_b32 s{d+3}, 0x20000")
    srd(SQ, sPTR, sTMP, BIAS, QHEAD + BIAS)
    srd(SK, sPTR + 2, sTMP + 1, BIAS, KHEAD + BIAS)
    srd(SV, sPTR + 4, sTMP + 1, BIAS, KHEAD + BIAS)
    srd(SO, sPTR + 6, sTMP, 0, QHEAD)
    sQB, sQA, sX = sTMP, sTMP + 1, sTMP + 2
    e(f"""
    s_lshl_b32 s{sQB}, s{sP}, 14
    s_add_u32 s{sQB}, s{sQB}, 81920
    s_lshl_b32 s{sQA}, s{sW}, 14
    s_add_u32 s{sQA}, s{sQA}, 114688
    s_cmp_eq_u32 s{sW}, 3
    s_cselect_b32 s{sQA}, 0x4000, s{sQA}
    s_lshl_b32 s{sX}, s{sTY}, 13
    s_add_u32 s{sX}, s{sX}, s{sQB}
    """)
    emit_dma8(SQ, 7, sX, cfg.q_nt)
    e(f"s_cmp_eq_u32 s{sTY}, 1\ns_cbranch_scc1 L_pro1")
    emit_dma8(SK, vKD, sWK, cfg.kv_nt, 0)
    e(f"v_add_u32_e32 v{vKD}, 0x8000, v{vKD}")
    emit_dma8(SQ, 8, sQA, cfg.q_nt, 0); emit_dma8(SQ, 9, sQA, cfg.q_nt, 8192)
    emit_dma8(SV, vVD, sWV, cfg.kv_nt, 32768)
    e(f"v_add_u32_e32 v{vVD}, 0x8000, v{vVD}")
    emit_dma8(SK, vKD, sWK, cfg.kv_nt, 2 * 32768)
    e(f"v_add_u32_e32 v{vKD}, 0x8000, v{vKD}")
    e(f"s_add_u32 s{sDMAV}, s{sWV}, {3*32768}\ns_add_u32 s{sDMAK}, s{sWK}, {4*32768}")
    e(f"s_mov_b32 s{sTE}, {f2u(cfg.T)}")
    e("s_branch L_pro2\nL_pro1:")
    emit_dma8(SQ, 8, sQA, cfg.q_nt, 0); emit_dma8(SQ, 9, sQA, cfg.q_nt, 8192)
    emit_dma8(SK, vKD, sWK, cfg.kv_nt, 32768)
    e(f"v_add_u32_e32 v{vKD}, 0x8000, v{vKD}")
    e(f"s_add_u32 s{sDMAV}, s{sWV}, {2*32768}\ns_add_u32 s{sDMAK}, s{sWK}, {3*32768}")
    e(f"s_mov_b32 s{sTE}, 0xff800000")
    e("L_pro2:")
    stamp_at(2)
    e(f"""
    s_mov_b32 s{sTO}, 0xff800000
    s_mov_b32 s{sFLA}, 0xff800000
    s_mov_b32 s{sFLB}, 0xff800000
    s_mov_b32 s{sT}, {f2u(cfg.T)}
    s_mov_b32 s{sC}, {f2u(1.4426950408889634 / 16)}
    s_mov_b32 s{sPOS}, 0x8000
    s_mov_b32 s{sNEG}, 0xfffe0000
    s_mov_b32 s{sCUR}, 0
    s_mov_b32 s{sCNT}, 15
    v_mov_b32_e32 v{vNMA}, 0
    v_mov_b32_e32 v{vNMB}, 0
    v_mov_b32_e32 v{vLA}, 0
    v_mov_b32_e32 v{vLB}, 0
    """)
    e(f"""
    v_bfe_u32 v4, v{L}, 3, 1
    v_bfe_u32 v5, v{L}, 4, 1
    v_lshlrev_b32_e32 v4, 13, v4
    v_lshl_add_u32 v4, v5, 12, v4
    v_and_b32_e32 v5, 7, v{L}
    v_lshl_add_u32 v4, v5, 7, v4
    v_bfe_u32 v5, v{L}, 1, 3
    v_lshrrev_b32_e32 v6, 5, v{L}
    v_xor_b32_e32 v5, v5, v6
    v_lshl_add_u32 v{vKA}, v5, 4, v4
    v_xor_b32_e32 v{vKA+1}, 32, v{vKA}
    v_xor_b32_e32 v{vKA+2}, 64, v{vKA}
    v_xor_b32_e32 v{vKA+3}, 0x60, v{vKA}
    """)
    e(f"""
    v_bfe_u32 v4, v{L}, 2, 2
    v_lshl_add_u32 v4, v6, 2, v4
    v_lshlrev_b32_e32 v4, 7, v4
    v_bfe_u32 v5, v{L}, 3, 1
    v_lshl_add_u32 v4, v5, 6, v4
    v_bfe_u32 v5, v{L}, 4, 1
    v_lshl_add_u32 v4, v5, 5, v4
    v_and_b32_e32 v5, 1, v{L}
    v_lshl_add_u32 v4, v5, 4, v4
    v_bfe_u32 v5, v{L}, 1, 1
    v_lshl_add_u32 v4, v5, 3, v4
    v_add_u32_e32 v{vVA}, 0x4000, v4
    v_xor_b32_e32 v{vVA+1}, 64, v{vVA}
    """)
    for i in range(4):
        e(f"v_add_u32_e32 v{vT+i}, s{sQA}, v{vKA+i}\nv_add_u32_e32 v{vT+4+i}, s{sQB}, v{vKA+i}")
    for i in range(256): e(f"v_accvgpr_write_b32 a{i}, 0")
    stamp_at(3)
    e(f"s_cmp_eq_u32 s{sTY}, 1\ns_cbranch_scc1 L_w1\ns_waitcnt vmcnt(16)\ns_branch L_w2\nL_w1:\ns_waitcnt vmcnt(8)\nL_w2:\ns_barrier")
    stamp_at(4)
    for ks in range(16):
        e(f"ds_read_b128 {vr(QB+4*ks,4)}, v{vT+4+(ks&3)} offset:{(ks>>2)*1024}")
    for ks in range(16):
        e(f"ds_read_b128 {vr(QA+4*ks,4)}, v{vT+(ks&3)} offset:{(ks>>2)*1024}")
    e("s_waitcnt lgkmcnt(0)\ns_barrier")
    stamp_at(5)
    e(f"s_cmp_eq_u32 s{sTY}, 1\ns_cbranch_scc1 L_first1")
    first_hs(0)
    e("L_first1:")
    first_hs(1)

def build():
    e(f"{KN}:")
    prologue()
    e(".p2align 6")
    e("L_hsE:"); hsE()
    e("L_hsO:"); hsO()
    tail(0); tail(1)
    slow("E", "E", "L_retE"); slow("O", "O", "L_retO")
    slow("E", "T0", "L_retT0"); slow("O", "T1", "L_retT1")
    rescale("L_rescA", OA); rescale("L_rescB", OB)
    if cfg.stamps:
        e("L_dump:\ns_waitcnt lgkmcnt(0)")
        e(f"""
        s_mov_b32 s{SD}, s{sPTR+10}
        s_mov_b32 s{SD+1}, s{sPTR+11}
        s_mov_b32 s{SD+2}, 0x100000
        s_mov_b32 s{SD+3}, 0x20000
        s_lshl_b32 s3, s2, 2
        s_add_u32 s3, s3, s{sW}
        s_lshl_b32 s3, s3, 7
        v_mov_b32_e32 v0, s3
        s_getreg_b32 s{sSTT}, hwreg(HW_REG_XCC_ID)
        s_getreg_b32 s{sSTT+1}, hwreg(HW_REG_HW_ID)
        """)
        for i in range(22):
            e(f"v_mov_b32_e32 v1, s{sCY+i}\nbuffer_store_dword v1, v0, {sr(SD,4)}, 0 offen offset:{4*i}\ns_nop 1")
    if cfg.diag >= 0:
        a, b = (cfg.diag % 100) // 10, cfg.diag % 10
        base = sCY if cfg.diag >= 100 else sRT
        e(f"L_diag:\ns_sub_u32 s3, s{base+b}, s{base+a}")
        if cfg.diag >= 100: e("s_mul_hi_u32 s3, s3, 0x19999999")
        if cfg.diagmul != 1: e(f"s_mul_i32 s3, s3, {cfg.diagmul}")
        if cfg.diagwg >= 0: e(f"s_cmp_eq_u32 s2, {cfg.diagwg}\ns_cselect_b32 s3, s3, 0")
        e(f"s_min_u32 s3, s3, 20000\ns_add_u32 s3, s3, {cfg.diagbase}\nL_spin:\ns_memrealtime {sr(sSTT,2)}\ns_waitcnt lgkmcnt(0)\ns_sub_u32 s{sTMP}, s{sSTT}, s{sRT}\ns_cmp_lt_u32 s{sTMP}, s3\ns_cbranch_scc1 L_spin")
    e("L_exit:\ns_endpgm")

HEAD = open("standalone__mha_softmax__near_ridge.s.ref").read().split("\n")[:9]
def main():
    ap = argparse.ArgumentParser()
    ap.add_argument("-o", default="standalone__mha_softmax__near_ridge.s")
    ap.add_argument("opts", nargs="*")
    a = ap.parse_args()
    for o in a.opts:
        k, v = o.split("=")
        assert hasattr(cfg, k), k
        setattr(cfg, k, type(getattr(cfg, k))(eval(v)))
    build()
    txt = "\n".join(HEAD) + "\n; @launch grid=(256,1,1) block=(256,1,1) lds=163840\n"
    txt += f'.amdgcn_target "amdgcn-amd-amdhsa--gfx950"\n.text\n.globl {KN}\n.p2align 8\n.type {KN},@function\n'
    txt += "\n".join(l if l.endswith(":") or l.startswith(".") else "    " + l for l in out) + "\n"
    txt += f""".section .rodata,"a"
.p2align 6
.amdhsa_kernel {KN}
  .amdhsa_next_free_vgpr 512
  .amdhsa_next_free_sgpr 102
  .amdhsa_accum_offset 256
  .amdhsa_group_segment_fixed_size 0
  .amdhsa_kernarg_size 48
  .amdhsa_user_sgpr_count 2
  .amdhsa_user_sgpr_kernarg_segment_ptr 1
  .amdhsa_system_sgpr_workgroup_id_x 1
.end_amdhsa_kernel
"""
    open(a.o, "w").write(txt)
main()
```

```python
import sys, re, struct, argparse

KN = "standalone__mha_softmax__near_ridge_kernel"
BIAS = 4096
QHEAD = 368 * 512
KHEAD = 512 * 512

def f2u(x): return struct.unpack("<I", struct.pack("<f", x))[0]

SQ, SK, SV, SO = 4, 8, 12, 16
SOFF = 20
sCNT, sCUR, sDELTA, sDMAK, sDMAV = 28, 29, 30, 31, 32
sC, sTE, sTO, sFLA, sFLB = 33, 34, 35, 36, 37
sW, sWK, sWV, sNREC = 38, 39, 40, 41
sPOS, sNEG, sT = 42, 43, 44
sTMP = 45
sPTR = 48
sRET = 60
sP, sTY, sROW0 = 62, 63, 64
SD = 96
sCY, sRT, sSTT = 70, 80, 90

QA, QB = 0, 64
SA2, SB, S1 = 128, 144, 160
FR = 176
vKA = 208
vVA = 212
vKD, vVD = 214, 215
vNMA, vNMB, vLA, vLB = 216, 217, 218, 219
vMXA, vMXB, vMX = 220, 221, 222
vT = 224
vLANE = 240
OA, OB = 0, 128

def vr(b, n): return f"v[{b}:{b+n-1}]"
def ar(b, n): return f"a[{b}:{b+n-1}]"
def sr(b, n): return f"s[{b}:{b+n-1}]"
def frag(n): return FR + 4 * (n % 8)

class Cfg:
    stamps = False
    T = 8.0
    waitlag = 3
    LA_E = 3
    LA_O = 4
    preE = 0
    preO = 8
    q_nt = False
    kv_nt = False
    o_fl = ''
    nodma = False
    diagwg = -1
    diagmul = 1
    diagbase = 5000
    diag = -1

cfg = Cfg()
out = []
def e(s):
    for l in s.split("\n"):
        l = l.strip()
        if l: out.append(l)

def mfma_qk(S, Q, ks, n):
    c = "0" if ks == 0 else vr(S, 16)
    return f"v_mfma_f32_32x32x16_bf16 {vr(S,16)}, {vr(frag(n),4)}, {vr(Q+4*ks,4)}, {c}"
def mfma_pv(O, S, m, db, n):
    return f"v_mfma_f32_32x32x16_bf16 {ar(O+16*db,16)}, {vr(frag(n),4)}, {vr(S+8*m,4)}, {ar(O+16*db,16)}"
def rd_k(ks, n):
    return [f"ds_read_b128 {vr(frag(n),4)}, v{vKA+(ks&3)} offset:{(ks>>2)*1024}"]
def rd_v(i, n):
    m, db = i >> 3, i & 7
    return [f"ds_read_b64_tr_b16 {vr(frag(n)+2*g,2)}, v{vVA+(db&1)} offset:{(g*8+m*4+(db>>1))*1024}" for g in (0, 1)]
def dma8(srd, va, base, nt=False, add=0):
    r = []
    for g in (0, 1):
        off = add + 4096 * g
        r.append(f"s_add_u32 m0, s{base}, {off}" if off else f"s_mov_b32 m0, s{base}")
        for lc in range(4):
            r.append(f"buffer_load_dwordx4 v{va}, {sr(srd,4)}, s{SOFF+4*g+lc} offen offset:{1024*lc}{' nt' if nt else ''} lds")
    return r
def emit_dma8(srd, va, base, nt=False, add=0):
    for x in dma8(srd, va, base, nt, add):
        e(x)
        if "m0" in x: e("s_nop 0")

def max_chain(S, dst):
    r = [f"v_max3_f32 v{dst}, v{S}, v{S+1}, v{S+2}"]
    for i in range(3, 15, 2): r.append(f"v_max3_f32 v{dst}, v{dst}, v{S+i}, v{S+i+1}")
    r.append(f"v_max_f32_e32 v{dst}, v{dst}, v{S+15}")
    return r
def fma1(S, i, nm): return f"v_fma_f32 v{S+i}, v{S+i}, s{sC}, v{nm}"
def ilv(*ls):
    r = []
    for t in range(max(map(len, ls))):
        for l in ls:
            if t < len(l): r.append(l[t])
    return r
def pre_check_single():
    return max_chain(S1, vMXA) + [f"v_fma_f32 v{vMXA}, v{vMXA}, s{sC}, v{vNMA}"] + \
        [fma1(S1, i, vNMA) for i in range(cfg.preE)] + [f"v_cmp_lt_f32_e32 vcc, s{sTE}, v{vMXA}"]
def pre_check_double():
    return ilv(max_chain(SA2, vMXA), max_chain(SB, vMXB)) + \
        [f"v_fma_f32 v{vMXA}, v{vMXA}, s{sC}, v{vNMA}", f"v_fma_f32 v{vMXB}, v{vMXB}, s{sC}, v{vNMB}"] + \
        ilv([fma1(SA2, i, vNMA) for i in range(cfg.preO)], [fma1(SB, i, vNMB) for i in range(cfg.preO)]) + \
        [f"v_max_f32_e32 v{vMX}, v{vMXA}, v{vMXB}", f"v_cmp_lt_f32_e32 vcc, s{sTO}, v{vMX}"]
def soft_half(S, m, nm, l, pre):
    b = 8 * m
    r = []
    for t in range(-1, 10):
        i = b + t + 1
        if 0 <= t + 1 < 8 and i >= pre: r.append(fma1(S, i, nm))
        if 0 <= t < 8: r.append(f"v_exp_f32_e32 v{S+b+t}, v{S+b+t}")
        if 0 <= t - 1 < 8: r.append(f"v_add_f32_e32 v{l}, v{l}, v{S+b+t-1}")
        if t - 1 >= 1 and (t - 1) % 2 == 1 and t - 1 < 8:
            j = (t - 1) // 2
            r.append(f"v_cvt_pk_bf16_f32 v{S+b+j}, v{S+b+2*j}, v{S+b+2*j+1}")
    return r

def cost(s): return 2 if s.startswith("v_exp") else 1

class Sched:
    def __init__(self, mf, pending):
        self.mf = mf
        self.rd = {}
        self.fill = {}
        self.head = {}
        self.pending = pending
    def reads(self, items):
        for g, n, t in items: self.rd.setdefault(g, []).append((n, t))
    def put(self, g, t): self.fill.setdefault(g, []).append(t)
    def puthead(self, g, t): self.head.setdefault(g, []).append(t)
    def load(self, g):
        return len(self.rd.get(g, [])) + sum(map(cost, self.fill.get(g, []))) + len(self.head.get(g, [])) + self.waits.get(g, 0)
    def plan_waits(self):
        q = list(self.pending)
        q = [(n, -1 - a) for n, a in q]
        done = 0
        w = {}
        for i, (t, n) in enumerate(self.mf):
            for (fn, _) in self.rd.get(i - 1, []): q.append((fn, i - 1))
            if n is None: continue
            last = max(k for k, (fn, _) in enumerate(q) if fn == n) + 1
            if last > done:
                k = last
                while k < len(q) and q[k][1] <= i - 1 - cfg.waitlag: k += 1
                N = min(15, len(q) - k)
                done = len(q) - N
                w[i] = N
        self.waitN = w
        self.waits = {i - 1: 1 for i in w}
    def spread(self, items, g0, g1, cap=6):
        tot = sum(map(cost, items)) + sum(self.load(g) for g in range(g0, g1 + 1))
        lvl = tot / (g1 - g0 + 1)
        g = g0; acc = 0.0; used = 0
        base = {x: self.load(x) for x in range(g0, g1 + 1)}
        cum_target = 0.0; cum = 0
        it = list(items)
        for g in range(g0, g1 + 1):
            cum_target += lvl; cum += base[g]
            while it and (cum + cost(it[0]) / 2 <= cum_target + 1e-9 or g == g1):
                x = it.pop(0); self.put(g, x); cum += cost(x)
    def emit(self, name):
        loads = []
        def gap(g):
            for t in self.head.get(g, []): e(t)
            for _, t in self.rd.get(g, []): e(t)
            for t in self.fill.get(g, []): e(t)
        gap(-1)
        for i, (t, n) in enumerate(self.mf):
            if i in self.waitN: e(f"s_waitcnt lgkmcnt({self.waitN[i]})")
            e(t)
            gap(i)
            loads.append(self.load(i))
        print(f"{name}: gap loads {' '.join(map(str, loads))}  total {sum(loads)} pre {self.load(-1)}", file=sys.stderr)

def adv_salu(kind):
    r = [f"s_add_u32 s{sDMAV}, s{sCUR}, s{sWV}" if kind == "E" else f"s_add_u32 s{sDMAK}, s{sCUR}, s{sWK}"]
    r += [f"s_add_u32 s{sCUR}, s{sCUR}, s{sPOS}",
          f"s_cmp_eq_u32 s{sCUR}, 0x28000\ns_cselect_b32 s{sDELTA}, s{sNEG}, s{sPOS}\ns_cselect_b32 s{sCUR}, 0, s{sCUR}"]
    return r
def k_adv(): return [f"v_add_u32_e32 v{vKA+i}, s{sDELTA}, v{vKA+i}" for i in range(4)]
def v_adv(): return [f"v_add_u32_e32 v{vVA+i}, s{sDELTA}, v{vVA+i}" for i in range(2)]
def dma_stream():
    r = [f"s_cmp_ge_u32 s{sCNT}, 2\ns_cselect_b32 s{SV+2}, s{sNREC}, 0",
         f"s_cmp_ge_u32 s{sCNT}, 4\ns_cselect_b32 s{SK+2}, s{sNREC}, 0"]
    r += dma8(SV, vVD, sDMAV, cfg.kv_nt) + [f"v_add_u32_e32 v{vVD}, 0x8000, v{vVD}"]
    r += dma8(SK, vKD, sDMAK, cfg.kv_nt) + [f"v_add_u32_e32 v{vKD}, 0x8000, v{vKD}"]
    return r

_oldcost = cost
def cost(s): return sum(2 if x.startswith("v_exp") else 1 for x in s.split("\n"))

def place_dma(S, g0, step=2):
    g = g0
    for x in dma_stream():
        if x.startswith("buffer_load"):
            S.put(g, x); g += step
        elif "m0" in x: S.put(g - 1, x)
        elif x.startswith("s_cmp"): S.put(g0 - 1, x)
        else: S.put(g - step, x)
    return g

def hsE():
    mf = []
    for ks in range(16):
        mf.append((mfma_qk(SA2, QA, ks, ks), ks)); mf.append((mfma_qk(SB, QB, ks, ks), None))
    for i in range(16): mf.append((mfma_pv(OA, S1, i >> 3, i & 7, 16 + i), 16 + i))
    S = Sched(mf, [(n, cfg.LA_E - n + 1) for n in range(cfg.LA_E)])
    rd = []
    g = 0
    for n in range(cfg.LA_E, 16):
        g = max(g, 2 * n - 15); rd.append((g, n, rd_k(n, n)[0])); g += 1
    for i in range(8):
        a, b = rd_v(i, 16 + i); rd.append((17 + 2 * i, 16 + i, a)); rd.append((18 + 2 * i, 16 + i, b))
    k = 0
    for i in range(8, 16):
        for x in rd_v(i, 16 + i):
            rd.append((33 + (k * 10) // 16, 16 + i, x)); k += 1
    for n in range(cfg.LA_O): rd.append((47 - cfg.LA_O + n, 32 + n, rd_k(n, 32 + n)[0]))
    S.reads(rd); S.plan_waits()
    S.puthead(0, "s_cbranch_vccnz L_slowE\nL_retE:")
    S.puthead(47 - cfg.LA_O, "s_waitcnt vmcnt(24)"); S.puthead(47 - cfg.LA_O, "s_barrier")
    for x in v_adv(): S.put(0, x)
    place_dma(S, 2, 2) if False else place_dma_e(S)
    S.spread(soft_half(S1, 0, vNMA, vLA, cfg.preE) + soft_half(S1, 1, vNMA, vLA, cfg.preE), 0, 30)
    S.put(46, f"s_sub_u32 s{sCNT}, s{sCNT}, 1")
    S.spread(pre_check_double(), 34, 47)
    S.put(47, "s_cbranch_scc1 L_tail1")
    S.emit("hsE")
def place_dma_e(S):
    g = place_dma(S, 1, 2) if False else None
    st = dma_stream()
    S.put(0, st[0]); S.put(1, st[1])
    g = 2
    for x in st[2:]:
        if x.startswith("buffer_load"): S.put(g, "s_nop 0" if cfg.nodma else x); g += 2
        elif "m0" in x: S.put(g - 1, x)
        else: S.put(g - 1, x)
    a = adv_salu("E")
    S.put(19, a[0]); S.put(21, a[1]); S.put(23, a[2])
    for i, x in enumerate(k_adv()): S.put(27 + 2 * (i // 2) + 0, x)

def hsO():
    mf = []
    for ks in range(16): mf.append((mfma_qk(S1, QA, ks, ks), ks))
    for i in range(16):
        mf.append((mfma_pv(OA, SA2, i >> 3, i & 7, 16 + i), 16 + i)); mf.append((mfma_pv(OB, SB, i >> 3, i & 7, 16 + i), None))
    S = Sched(mf, [(n, cfg.LA_O - n) for n in range(cfg.LA_O)])
    rd = []
    for n in range(cfg.LA_O, 16): rd.append((max(0, n - cfg.LA_O - 1), n, rd_k(n, n)[0]))
    for i in range(16):
        a, b = rd_v(i, 16 + i); rd.append((11 + 2 * i, 16 + i, a)); rd.append((12 + 2 * i, 16 + i, b))
    for n in range(cfg.LA_E): rd.append((46 - cfg.LA_E + n, 32 + n, rd_k(n, 32 + n)[0]))
    S.reads(rd); S.plan_waits()
    S.puthead(0, "s_cbranch_vccnz L_slowO\nL_retO:")
    S.puthead(46 - cfg.LA_E, "s_waitcnt vmcnt(16)"); S.puthead(46 - cfg.LA_E, "s_barrier")
    for i, x in enumerate(v_adv()): S.put(8 + i, x)
    S.spread(ilv(soft_half(SA2, 0, vNMA, vLA, cfg.preO), soft_half(SB, 0, vNMB, vLB, cfg.preO)), 0, 14)
    S.spread(ilv(soft_half(SA2, 1, vNMA, vLA, cfg.preO), soft_half(SB, 1, vNMB, vLB, cfg.preO)), 15, 30)
    a = adv_salu("O")
    S.put(32, a[0]); S.put(33, a[1]); S.put(34, a[2])
    for i, x in enumerate(k_adv()): S.put(36 + i, x)
    S.put(46, f"s_sub_u32 s{sCNT}, s{sCNT}, 1")
    S.spread(pre_check_single(), 32, 47)
    S.put(47, "s_cbranch_scc0 L_hsE")
    S.emit("hsO")

def first_hs(ty):
    mf = []
    for ks in range(16):
        if ty == 0:
            mf.append((mfma_qk(SA2, QA, ks, ks), ks)); mf.append((mfma_qk(SB, QB, ks, ks), None))
        else: mf.append((mfma_qk(S1, QA, ks, ks), ks))
    S = Sched(mf, [])
    st = 2 if ty == 0 else 1
    rd = [(-1, n, rd_k(n, n)[0]) for n in range(8)]
    for n in range(8, 16): rd.append((st * (n - 8) + st - 1, n, rd_k(n, n)[0]))
    S.reads(rd); S.plan_waits()
    d = dma8(SV, vVD, sDMAV, cfg.kv_nt) + [f"v_add_u32_e32 v{vVD}, 0x8000, v{vVD}"] + \
        dma8(SK, vKD, sDMAK, cfg.kv_nt) + [f"v_add_u32_e32 v{vKD}, 0x8000, v{vKD}"]
    g = 0
    for x in d:
        if x.startswith("buffer_load"): S.put(g, x); g += st
        else: S.put(g - 1, x)
    S.emit(f"first{ty}")
    if ty == 1:
        e(f"s_add_u32 s{sDMAV}, s{sWV}, {4*32768}")
    for x in adv_salu("E" if ty == 0 else "O"): e(x)
    for x in k_adv(): e(x)
    e("s_nop 7")
    e(f"s_waitcnt vmcnt({24 if ty == 0 else 16})\ns_barrier")
    for n in range(cfg.LA_O if ty == 0 else cfg.LA_E): e(rd_k(n, n)[0])
    for x in (pre_check_double() if ty == 0 else pre_check_single()): e(x)
    e(f"s_sub_u32 s{sCNT}, s{sCNT}, 1")
    e(f"s_branch {'L_hsO' if ty == 0 else 'L_hsE'}")

def slow_unit(tag, S, pre, mx, nm, l, fl, resc):
    e(f"s_cmp_lg_u32 s{fl}, 0")
    e(f"s_cbranch_scc1 L_do{tag}")
    e(f"v_cmp_lt_f32_e32 vcc, s{sT}, v{mx}")
    e(f"s_cbranch_vccz L_skip{tag}")
    e(f"L_do{tag}:")
    e(f"v_mov_b32_e32 v{vT}, v{mx}\ns_nop 1\nv_permlane32_swap_b32_e32 v{mx}, v{vT}\ns_nop 1")
    e(f"v_max3_f32 v{mx}, v{mx}, v{vT}, s{fl}")
    e(f"v_sub_f32_e32 v{nm}, v{nm}, v{mx}")
    for i in range(pre): e(f"v_sub_f32_e32 v{S+i}, v{S+i}, v{mx}")
    e(f"s_cmp_lg_u32 s{fl}, 0")
    e(f"s_mov_b32 s{fl}, 0")
    e(f"s_cbranch_scc1 L_skip{tag}")
    e(f"v_exp_f32_e64 v{vT}, -v{mx}\ns_nop 0")
    e(f"v_mul_f32_e32 v{l}, v{l}, v{vT}")
    e(f"s_call_b64 {sr(sRET,2)}, {resc}")
    e(f"L_skip{tag}:")
def slow(kind, tag, ret):
    e(f"L_slow{tag}:")
    if kind == "E":
        slow_unit(tag + "a", S1, cfg.preE, vMXA, vNMA, vLA, sFLA, "L_rescA")
        e(f"s_mov_b32 s{sTE}, s{sT}")
    else:
        slow_unit(tag + "a", SA2, cfg.preO, vMXA, vNMA, vLA, sFLA, "L_rescA")
        slow_unit(tag + "b", SB, cfg.preO, vMXB, vNMB, vLB, sFLB, "L_rescB")
        e(f"s_mov_b32 s{sTO}, s{sT}")
    e(f"s_branch {ret}")
def rescale(name, O):
    e(f"{name}:\ns_nop 15")
    for i in range(0, 128, 4):
        for j in range(4): e(f"v_accvgpr_read_b32 v{vT+1+j}, a{O+i+j}")
        for j in range(4): e(f"v_mul_f32_e32 v{vT+1+j}, v{vT+1+j}, v{vT}")
        for j in range(4): e(f"v_accvgpr_write_b32 a{O+i+j}, v{vT+1+j}")
    e(f"s_nop 1\ns_setpc_b64 {sr(sRET,2)}")

vWA = 0
vRA = 4
vGA = 5
vXW, vXR = 9, 10
vF0, vF1 = 12, 14
vE = 16
ML_OFF = 147456

def out_tile(getregs, dbs, lc0):
    nb = 0
    for k in range(0, len(dbs), 2):
        lcs = k // 2
        for db in dbs[k:k + 2]:
            w = vE + 32 * (nb % 2); nb += 1
            getregs(db, w)
            for j in range(8): e(f"v_cvt_pk_bf16_f32 v{w+16+j}, v{w+2*j}, v{w+2*j+1}")
            for g1 in (0, 1):
                e(f"ds_write_b128 v{vWA+(db&1)*2+g1}, {vr(w+16+4*g1,4)} offset:{lcs*4096}")
        r = 96 + 16 * (lcs % 2)
        e("s_waitcnt lgkmcnt(0)")
        for rb in range(4): e(f"ds_read_b128 {vr(r+4*rb,4)}, v{vRA} offset:{lcs*4096+rb*1024}")
        for rb in range(4):
            e(f"s_waitcnt lgkmcnt({3-rb})")
            e(f"buffer_store_dwordx4 {vr(r+4*rb,4)}, v{vGA+rb}, {sr(SO,4)}, 0 offen offset:{(lc0+lcs)*128}{' ' + cfg.o_fl.replace('_', ' ') if cfg.o_fl else ''}")

def tail(ty):
    e(f"L_tail{ty}:")
    stamp_at(6)
    e("s_waitcnt vmcnt(0)\ns_barrier")
    for x in v_adv(): e(x)
    e(f"s_cbranch_vccnz L_slowT{ty}\nL_retT{ty}:")
    mf = []
    for i in range(16):
        if ty == 0: mf.append((mfma_pv(OA, S1, i >> 3, i & 7, i), i))
        else:
            mf.append((mfma_pv(OA, SA2, i >> 3, i & 7, i), i)); mf.append((mfma_pv(OB, SB, i >> 3, i & 7, i), None))
    S = Sched(mf, [])
    st = 1 if ty == 0 else 2
    rd = []
    for i in range(16):
        for x in rd_v(i, i): rd.append((-1 if i < 7 else st * (i - 7) + st - 1, i, x))
    S.reads(rd); S.plan_waits()
    if ty == 0:
        for x in soft_half(S1, 0, vNMA, vLA, cfg.preE): S.put(-1, x)
        S.put(-1, "s_nop 0")
        S.spread(soft_half(S1, 1, vNMA, vLA, cfg.preE), 0, 6)
    else:
        for x in ilv(soft_half(SA2, 0, vNMA, vLA, cfg.preO), soft_half(SB, 0, vNMB, vLB, cfg.preO)): S.put(-1, x)
        S.put(-1, "s_nop 0")
        S.spread(ilv(soft_half(SA2, 1, vNMA, vLA, cfg.preO), soft_half(SB, 1, vNMB, vLB, cfg.preO)), 0, 14)
    S.emit(f"tail{ty}")
    stamp_at(7)
    L = vLANE
    e(f"""
    s_lshl_b32 s{sTMP}, s{sW}, 14
    s_add_u32 s{sTMP}, s{sTMP}, 0x10000
    v_and_b32_e32 v{vE}, 7, v{L}
    v_lshrrev_b32_e32 v{vE+1}, 5, v{L}
    v_xor_b32_e32 v{vE+1}, v{vE+1}, v{vE}
    v_and_b32_e32 v{vE+2}, 31, v{L}
    v_lshlrev_b32_e32 v{vE+2}, 7, v{vE+2}
    v_lshl_add_u32 v{vE+2}, v{vE+1}, 4, v{vE+2}
    v_add_u32_e32 v{vWA}, s{sTMP}, v{vE+2}
    v_xor_b32_e32 v{vWA+1}, 32, v{vWA}
    v_xor_b32_e32 v{vWA+2}, 64, v{vWA}
    v_xor_b32_e32 v{vWA+3}, 0x60, v{vWA}
    v_lshrrev_b32_e32 v{vE+1}, 3, v{L}
    v_xor_b32_e32 v{vE+2}, v{vE+1}, v{vE}
    v_lshlrev_b32_e32 v{vE+2}, 4, v{vE+2}
    v_lshl_add_u32 v{vE+2}, v{vE+1}, 7, v{vE+2}
    v_add_u32_e32 v{vRA}, s{sTMP}, v{vE+2}
    v_lshlrev_b32_e32 v{vE}, 4, v{vE}
    v_lshl_add_u32 v{vE}, v{vE+1}, 9, v{vE}
    s_lshl_b32 s{sTMP}, s{sW}, 5
    s_add_u32 s{sTMP}, s{sTMP}, s{sROW0}
    s_lshl_b32 s{sTMP}, s{sTMP}, 9
    v_add_u32_e32 v{vGA}, s{sTMP}, v{vE}
    v_add_u32_e32 v{vGA+1}, 0x1000, v{vGA}
    v_add_u32_e32 v{vGA+2}, 0x2000, v{vGA}
    v_add_u32_e32 v{vGA+3}, 0x3000, v{vGA}
    s_lshl_b32 s{sTMP}, s{sW}, 14
    s_cmp_eq_u32 s{sW}, 3
    s_cselect_b32 s{sTMP}, 0x20000, s{sTMP}
    s_xor_b32 s{sTMP+1}, s{sW}, 1
    s_lshl_b32 s{sTMP+2}, s{sTMP+1}, 14
    s_cmp_eq_u32 s{sTMP+1}, 3
    s_cselect_b32 s{sTMP+2}, 0x20000, s{sTMP+2}
    v_lshlrev_b32_e32 v{vE}, 4, v{L}
    v_add_u32_e32 v{vXW}, s{sTMP}, v{vE}
    v_add_u32_e32 v{vXR}, s{sTMP+2}, v{vE}
    """)
    for l in (vLA, vLB):
        e(f"v_mov_b32_e32 v{vT}, v{l}\ns_nop 1\nv_permlane32_swap_b32_e32 v{l}, v{vT}\ns_nop 1\nv_add_f32_e32 v{l}, v{l}, v{vT}")
    e(f"""
    s_lshl_b32 s{sTMP}, s{sW}, 9
    s_add_u32 s{sTMP}, s{sTMP}, {ML_OFF}
    v_lshlrev_b32_e32 v{vE}, 3, v{L}
    v_add_u32_e32 v{vE}, s{sTMP}, v{vE}
    v_xor_b32_e32 v11, 0x200, v{vE}
    v_mov_b32_e32 v{vE+2}, v{vNMB}
    v_mov_b32_e32 v{vE+3}, v{vLB}
    ds_write_b64 v{vE}, {vr(vE+2,2)}
    """)
    snd = OB + 64 * (1 - ty)
    for i in range(16): e(f"ds_write_b128 v{vXW}, {ar(snd+4*i,4)} offset:{1024*i}")
    e(f"v_rcp_f32_e32 v{vF0}, v{vLA}\ns_nop 0")
    def getA(db, w):
        for j in range(16): e(f"v_accvgpr_read_b32 v{w+j}, a{OA+16*db+j}")
        for j in range(0, 16, 2): e(f"v_pk_mul_f32 {vr(w+j,2)}, {vr(w+j,2)}, {vr(vF0,2)} op_sel_hi:[1,0]")
    out_tile(getA, list(range(8)), 0)
    stamp_at(8)
    e("s_waitcnt lgkmcnt(0)\ns_barrier")
    e(f"ds_read_b64 {vr(vE,2)}, v11")
    X = 128
    for i in range(16): e(f"ds_read_b128 {vr(X+4*i,4)}, v{vXR} offset:{1024*i}")
    e(f"""
    s_lshl_b32 s{sTMP}, s{sP}, 5
    s_lshl_b32 s{sTMP+1}, s{sW}, 5
    s_sub_u32 s{sTMP}, s{sTMP}, s{sTMP+1}
    s_add_u32 s{sTMP}, s{sTMP}, 128
    s_lshl_b32 s{sTMP}, s{sTMP}, 9
    """)
    for rb in range(4): e(f"v_add_u32_e32 v{vGA+rb}, s{sTMP}, v{vGA+rb}")
    e(f"""
    s_waitcnt lgkmcnt(15)
    v_min_f32_e32 v{vE+2}, v{vE}, v{vNMB}
    v_sub_f32_e32 v{vF0}, v{vE+2}, v{vNMB}
    v_sub_f32_e32 v{vF1}, v{vE+2}, v{vE}
    v_exp_f32_e32 v{vF0}, v{vF0}
    v_exp_f32_e32 v{vF1}, v{vF1}
    s_nop 0
    v_mul_f32_e32 v{vE+2}, v{vF0}, v{vLB}
    v_fmac_f32_e32 v{vE+2}, v{vF1}, v{vE+1}
    v_rcp_f32_e32 v{vE+2}, v{vE+2}
    s_nop 0
    v_mul_f32_e32 v{vF0}, v{vF0}, v{vE+2}
    v_mul_f32_e32 v{vF1}, v{vF1}, v{vE+2}
    s_waitcnt lgkmcnt(0)
    """)
    def getB(db, w):
        x = X + 16 * (db - 4 * ty)
        for j in range(16): e(f"v_accvgpr_read_b32 v{w+j}, a{OB+16*db+j}")
        for j in range(0, 16, 2): e(f"v_pk_mul_f32 {vr(w+j,2)}, {vr(w+j,2)}, {vr(vF0,2)} op_sel_hi:[1,0]")
        for j in range(0, 16, 2): e(f"v_pk_fma_f32 {vr(w+j,2)}, {vr(x+j,2)}, {vr(vF1,2)}, {vr(w+j,2)} op_sel_hi:[1,0,1]")
    out_tile(getB, list(range(4 * ty, 4 * ty + 4)), 2 * ty)
    if cfg.stamps:
        e("s_waitcnt vmcnt(0)")
        stamp_at(9)
        e("s_branch L_dump")
    elif cfg.diag >= 0:
        e("s_waitcnt vmcnt(0)")
        stamp_at(9)
        e("s_branch L_diag")
    else:
        e("s_endpgm")

def stamp_at(i):
    if cfg.stamps or (cfg.diag >= 0 and i in (0, (cfg.diag % 100) // 10, cfg.diag % 10)):
        e(f"s_memtime {sr(sSTT,2)}\ns_memrealtime {sr(sSTT+2,2)}\ns_waitcnt lgkmcnt(0)\ns_mov_b32 s{sCY+i}, s{sSTT}\ns_mov_b32 s{sRT+i}, s{sSTT+2}")

def prologue():
    L = vLANE
    stamp_at(0)
    e(f"""
    s_cmp_ge_u32 s2, 256
    s_cbranch_scc1 L_exit
    s_load_dwordx8 {sr(sPTR,8)}, s[0:1], 0
    s_load_dwordx4 {sr(sPTR+8,4)}, s[0:1], 32
    v_lshrrev_b32_e32 v1, 6, v0
    v_and_b32_e32 v{L}, 63, v0
    v_readfirstlane_b32 s{sW}, v1
    s_lshr_b32 s3, s2, 4
    s_lshl_b32 s3, s3, 3
    s_and_b32 s{sTMP}, s2, 7
    s_add_u32 s3, s3, s{sTMP}
    s_bfe_u32 s{sROW0}, s2, 0x10003
    s_mul_i32 s{sROW0}, s{sROW0}, 192
    s_and_b32 s{sTY}, s{sW}, 1
    s_lshr_b32 s{sP}, s{sW}, 1
    s_lshl_b32 s{sWK}, s{sP}, 13
    s_add_u32 s{sWV}, s{sWK}, 0x4000
    s_mul_i32 s{sTMP}, s3, {QHEAD}
    s_lshl_b32 s{sTMP+1}, s3, 18
    """)
    for g in (0, 1):
        for lc in range(4): e(f"s_mov_b32 s{SOFF+4*g+lc}, {BIAS + g*8192 - lc*896}")
    e(f"""
    v_lshrrev_b32_e32 v4, 3, v{L}
    v_and_b32_e32 v5, 7, v{L}
    v_lshrrev_b32_e32 v6, 1, v4
    v_xor_b32_e32 v2, v5, v6
    v_lshlrev_b32_e32 v2, 4, v2
    v_lshl_add_u32 v2, v4, 9, v2
    v_and_b32_e32 v6, 1, v6
    v_lshlrev_b32_e32 v6, 2, v6
    v_xor_b32_e32 v3, v5, v6
    v_lshlrev_b32_e32 v3, 4, v3
    v_lshl_add_u32 v3, v4, 9, v3
    s_mul_i32 s{sTMP+2}, s{sP}, 0x1040
    v_xor_b32_e32 v{vKD}, s{sTMP+2}, v2
    s_lshl_b32 s{sTMP+2}, s{sP}, 12
    v_add_u32_e32 v{vVD}, s{sTMP+2}, v3
    s_lshl_b32 s{sTMP+2}, s{sTY}, 14
    v_add_u32_e32 v{vKD}, s{sTMP+2}, v{vKD}
    v_add_u32_e32 v{vVD}, s{sTMP+2}, v{vVD}
    s_mul_i32 s{sTMP+2}, s{sTY}, 0x1040
    v_xor_b32_e32 v7, s{sTMP+2}, v2
    s_lshl_b32 s{sTMP+2}, s{sP}, 5
    s_add_u32 s{sTMP+2}, s{sTMP+2}, s{sROW0}
    s_add_u32 s{sTMP+2}, s{sTMP+2}, 128
    s_lshl_b32 s{sTMP+2}, s{sTMP+2}, 9
    v_add_u32_e32 v7, s{sTMP+2}, v7
    s_lshl_b32 s{sTMP+2}, s{sW}, 5
    s_add_u32 s{sTMP+2}, s{sTMP+2}, s{sROW0}
    s_lshl_b32 s{sTMP+2}, s{sTMP+2}, 9
    v_add_u32_e32 v8, s{sTMP+2}, v2
    v_xor_b32_e32 v9, 0x1040, v8
    s_mov_b32 s{sNREC}, {KHEAD + BIAS}
    s_waitcnt lgkmcnt(0)
    """)
    stamp_at(1)
    def srd(d, p, off, bias, n):
        e(f"s_add_u32 s{d}, s{p}, s{off}\ns_addc_u32 s{d+1}, s{p+1}, 0")
        if bias: e(f"s_sub_u32 s{d}, s{d}, {bias}\ns_subb_u32 s{d+1}, s{d+1}, 0")
        e(f"s_mov_b32 s{d+2}, {n}\ns_mov_b32 s{d+3}, 0x20000")
    srd(SQ, sPTR, sTMP, BIAS, QHEAD + BIAS)
    srd(SK, sPTR + 2, sTMP + 1, BIAS, KHEAD + BIAS)
    srd(SV, sPTR + 4, sTMP + 1, BIAS, KHEAD + BIAS)
    srd(SO, sPTR + 6, sTMP, 0, QHEAD)
    sQB, sQA, sX = sTMP, sTMP + 1, sTMP + 2
    e(f"""
    s_lshl_b32 s{sQB}, s{sP}, 14
    s_add_u32 s{sQB}, s{sQB}, 81920
    s_lshl_b32 s{sQA}, s{sW}, 14
    s_add_u32 s{sQA}, s{sQA}, 114688
    s_cmp_eq_u32 s{sW}, 3
    s_cselect_b32 s{sQA}, 0x4000, s{sQA}
    s_lshl_b32 s{sX}, s{sTY}, 13
    s_add_u32 s{sX}, s{sX}, s{sQB}
    """)
    emit_dma8(SQ, 7, sX, cfg.q_nt)
    e(f"s_cmp_eq_u32 s{sTY}, 1\ns_cbranch_scc1 L_pro1")
    emit_dma8(SK, vKD, sWK, cfg.kv_nt, 0)
    e(f"v_add_u32_e32 v{vKD}, 0x8000, v{vKD}")
    emit_dma8(SQ, 8, sQA, cfg.q_nt, 0); emit_dma8(SQ, 9, sQA, cfg.q_nt, 8192)
    emit_dma8(SV, vVD, sWV, cfg.kv_nt, 32768)
    e(f"v_add_u32_e32 v{vVD}, 0x8000, v{vVD}")
    emit_dma8(SK, vKD, sWK, cfg.kv_nt, 2 * 32768)
    e(f"v_add_u32_e32 v{vKD}, 0x8000, v{vKD}")
    e(f"s_add_u32 s{sDMAV}, s{sWV}, {3*32768}\ns_add_u32 s{sDMAK}, s{sWK}, {4*32768}")
    e(f"s_mov_b32 s{sTE}, {f2u(cfg.T)}")
    e("s_branch L_pro2\nL_pro1:")
    emit_dma8(SQ, 8, sQA, cfg.q_nt, 0); emit_dma8(SQ, 9, sQA, cfg.q_nt, 8192)
    emit_dma8(SK, vKD, sWK, cfg.kv_nt, 32768)
    e(f"v_add_u32_e32 v{vKD}, 0x8000, v{vKD}")
    e(f"s_add_u32 s{sDMAV}, s{sWV}, {2*32768}\ns_add_u32 s{sDMAK}, s{sWK}, {3*32768}")
    e(f"s_mov_b32 s{sTE}, 0xff800000")
    e("L_pro2:")
    stamp_at(2)
    e(f"""
    s_mov_b32 s{sTO}, 0xff800000
    s_mov_b32 s{sFLA}, 0xff800000
    s_mov_b32 s{sFLB}, 0xff800000
    s_mov_b32 s{sT}, {f2u(cfg.T)}
    s_mov_b32 s{sC}, {f2u(1.4426950408889634 / 16)}
    s_mov_b32 s{sPOS}, 0x8000
    s_mov_b32 s{sNEG}, 0xfffe0000
    s_mov_b32 s{sCUR}, 0
    s_mov_b32 s{sCNT}, 15
    v_mov_b32_e32 v{vNMA}, 0
    v_mov_b32_e32 v{vNMB}, 0
    v_mov_b32_e32 v{vLA}, 0
    v_mov_b32_e32 v{vLB}, 0
    """)
    e(f"""
    v_bfe_u32 v4, v{L}, 3, 1
    v_bfe_u32 v5, v{L}, 4, 1
    v_lshlrev_b32_e32 v4, 13, v4
    v_lshl_add_u32 v4, v5, 12, v4
    v_and_b32_e32 v5, 7, v{L}
    v_lshl_add_u32 v4, v5, 7, v4
    v_bfe_u32 v5, v{L}, 1, 3
    v_lshrrev_b32_e32 v6, 5, v{L}
    v_xor_b32_e32 v5, v5, v6
    v_lshl_add_u32 v{vKA}, v5, 4, v4
    v_xor_b32_e32 v{vKA+1}, 32, v{vKA}
    v_xor_b32_e32 v{vKA+2}, 64, v{vKA}
    v_xor_b32_e32 v{vKA+3}, 0x60, v{vKA}
    """)
    e(f"""
    v_bfe_u32 v4, v{L}, 2, 2
    v_lshl_add_u32 v4, v6, 2, v4
    v_lshlrev_b32_e32 v4, 7, v4
    v_bfe_u32 v5, v{L}, 3, 1
    v_lshl_add_u32 v4, v5, 6, v4
    v_bfe_u32 v5, v{L}, 4, 1
    v_lshl_add_u32 v4, v5, 5, v4
    v_and_b32_e32 v5, 1, v{L}
    v_lshl_add_u32 v4, v5, 4, v4
    v_bfe_u32 v5, v{L}, 1, 1
    v_lshl_add_u32 v4, v5, 3, v4
    v_add_u32_e32 v{vVA}, 0x4000, v4
    v_xor_b32_e32 v{vVA+1}, 64, v{vVA}
    """)
    for i in range(4):
        e(f"v_add_u32_e32 v{vT+i}, s{sQA}, v{vKA+i}\nv_add_u32_e32 v{vT+4+i}, s{sQB}, v{vKA+i}")
    for i in range(256): e(f"v_accvgpr_write_b32 a{i}, 0")
    stamp_at(3)
    e(f"s_cmp_eq_u32 s{sTY}, 1\ns_cbranch_scc1 L_w1\ns_waitcnt vmcnt(16)\ns_branch L_w2\nL_w1:\ns_waitcnt vmcnt(8)\nL_w2:\ns_barrier")
    stamp_at(4)
    for ks in range(16):
        e(f"ds_read_b128 {vr(QB+4*ks,4)}, v{vT+4+(ks&3)} offset:{(ks>>2)*1024}")
    for ks in range(16):
        e(f"ds_read_b128 {vr(QA+4*ks,4)}, v{vT+(ks&3)} offset:{(ks>>2)*1024}")
    e("s_waitcnt lgkmcnt(0)\ns_barrier")
    stamp_at(5)
    e(f"s_cmp_eq_u32 s{sTY}, 1\ns_cbranch_scc1 L_first1")
    first_hs(0)
    e("L_first1:")
    first_hs(1)

def build():
    e(f"{KN}:")
    prologue()
    e(".p2align 6")
    e("L_hsE:"); hsE()
    e("L_hsO:"); hsO()
    tail(0); tail(1)
    slow("E", "E", "L_retE"); slow("O", "O", "L_retO")
    slow("E", "T0", "L_retT0"); slow("O", "T1", "L_retT1")
    rescale("L_rescA", OA); rescale("L_rescB", OB)
    if cfg.stamps:
        e("L_dump:\ns_waitcnt lgkmcnt(0)")
        e(f"""
        s_mov_b32 s{SD}, s{sPTR+10}
        s_mov_b32 s{SD+1}, s{sPTR+11}
        s_mov_b32 s{SD+2}, 0x100000
        s_mov_b32 s{SD+3}, 0x20000
        s_lshl_b32 s3, s2, 2
        s_add_u32 s3, s3, s{sW}
        s_lshl_b32 s3, s3, 7
        v_mov_b32_e32 v0, s3
        s_getreg_b32 s{sSTT}, hwreg(HW_REG_XCC_ID)
        s_getreg_b32 s{sSTT+1}, hwreg(HW_REG_HW_ID)
        """)
        for i in range(22):
            e(f"v_mov_b32_e32 v1, s{sCY+i}\nbuffer_store_dword v1, v0, {sr(SD,4)}, 0 offen offset:{4*i}\ns_nop 1")
    if cfg.diag >= 0:
        a, b = (cfg.diag % 100) // 10, cfg.diag % 10
        base = sCY if cfg.diag >= 100 else sRT
        e(f"L_diag:\ns_sub_u32 s3, s{base+b}, s{base+a}")
        if cfg.diag >= 100: e("s_mul_hi_u32 s3, s3, 0x19999999")
        if cfg.diagmul != 1: e(f"s_mul_i32 s3, s3, {cfg.diagmul}")
        if cfg.diagwg >= 0: e(f"s_cmp_eq_u32 s2, {cfg.diagwg}\ns_cselect_b32 s3, s3, 0")
        e(f"s_min_u32 s3, s3, 20000\ns_add_u32 s3, s3, {cfg.diagbase}\nL_spin:\ns_memrealtime {sr(sSTT,2)}\ns_waitcnt lgkmcnt(0)\ns_sub_u32 s{sTMP}, s{sSTT}, s{sRT}\ns_cmp_lt_u32 s{sTMP}, s3\ns_cbranch_scc1 L_spin")
    e("L_exit:\ns_endpgm")

HEAD = open("standalone__mha_softmax__near_ridge.s.ref").read().split("\n")[:9]
def main():
    ap = argparse.ArgumentParser()
    ap.add_argument("-o", default="standalone__mha_softmax__near_ridge.s")
    ap.add_argument("opts", nargs="*")
    a = ap.parse_args()
    for o in a.opts:
        k, v = o.split("=")
        assert hasattr(cfg, k), k
        setattr(cfg, k, v if isinstance(getattr(cfg, k), str) else type(getattr(cfg, k))(eval(v)))
    build()
    txt = "\n".join(HEAD) + "\n; @launch grid=(256,1,1) block=(256,1,1) lds=163840\n"
    txt += f'.amdgcn_target "amdgcn-amd-amdhsa--gfx950"\n.text\n.globl {KN}\n.p2align 8\n.type {KN},@function\n'
    txt += "\n".join(l if l.endswith(":") or l.startswith(".") else "    " + l for l in out) + "\n"
    txt += f""".section .rodata,"a"
.p2align 6
.amdhsa_kernel {KN}
  .amdhsa_next_free_vgpr 512
  .amdhsa_next_free_sgpr 102
  .amdhsa_accum_offset 256
  .amdhsa_group_segment_fixed_size 0
  .amdhsa_kernarg_size 48
  .amdhsa_user_sgpr_count 2
  .amdhsa_user_sgpr_kernarg_segment_ptr 1
  .amdhsa_system_sgpr_workgroup_id_x 1
.end_amdhsa_kernel
"""
    open(a.o, "w").write(txt)
main()
```

```python
import sys, struct, argparse

KN = "standalone__mha_softmax__near_ridge_kernel"
BIAS = 4096
QHEAD = 368 * 512
KHEAD = 512 * 512
def f2u(x): return struct.unpack("<I", struct.pack("<f", x))[0]

SQ, SK, SV, SO, SO2 = 4, 8, 12, 16, 20
sKO = 24
sVO = 28
sW, sW4, sC, sRUN, sQL, sHEAD, sSHORT = 31, 32, 33, 34, 35, 36, 37
sT = 38
sSO = 44
sLIM = 47
sFLAG = 48
sPC = 50
sPTR = 52
SF = 64
sCY, sRT, sSTT, SD = 70, 80, 90, 96
def P(qt, kt): return 64 * qt + 4 * kt
ACC = 192
def acc(dt, qt): return ACC + 12 * dt + 4 * qt
vKA, vKD, vVD, vVA, vSW, vSR, vST = 240, 242, 243, 244, 245, 246, 247
vNM, vIL, vT = 248, 251, 254
def Qf(qt, ks): return 32 * qt + 4 * ks
RING = 96
def fr(grp, j): return RING + 32 * (grp & 1) + 4 * j
aL, aONE, aRB = 160, 172, 176
STAGE = 131072
FLAGS = 155648

def vr(b, n): return f"v[{b}:{b+n-1}]"
def ar(b, n): return f"a[{b}:{b+n-1}]"
def sr(b, n): return f"s[{b}:{b+n-1}]"

class Cfg:
    stamps = False
    q_fl = 'nt'
    kv_fl = 'nt'
    o_fl = 'sc1'
    lead = 8
    backlog = 24
    dstep2 = 6
    touch = True
    lim = 60
    verbose = False
    diagwg = -1
    diagmul = 1
    diagbase = 5000
    diag = -1
cfg = Cfg()
out = []
def e(s):
    for l in s.split("\n"):
        l = l.strip()
        if l: out.append(l)
def fl(x): return " " + x.replace("_", " ") if x else ""

def stamp_txt(i):
    if cfg.stamps or (cfg.diag >= 0 and i in (0, (cfg.diag % 100) // 10, cfg.diag % 10)):
        return f"s_memtime {sr(sSTT,2)}\ns_memrealtime {sr(sSTT+2,2)}\ns_waitcnt lgkmcnt(0)\ns_mov_b32 s{sCY+i}, s{sSTT}\ns_mov_b32 s{sRT+i}, s{sSTT+2}"
    return ""
def stamp(i): e(stamp_txt(i))

def mfma(d, a, b, c): return f"v_mfma_f32_16x16x32_bf16 {d}, {a}, {b}, {c}"
def mf_qk(S, grp, qt, ks): return mfma(vr(S, 4), ar(fr(grp, ks), 4), ar(Qf(qt, ks), 4), "0" if ks == 0 else vr(S, 4))
def rd_k(grp, ks):
    t, kg = grp >> 1, grp & 1
    return f"ds_read_b128 {ar(fr(grp,ks),4)}, v{vKA+(ks&1)} offset:{(t&3)*16384 + kg*8192 + (ks>>1)*1024}"
def rd_v(grp, j, kg):
    kh = (grp >> 2) & 1; kk = 8 * kh + j
    return f"ds_read_b64_tr_b16 {ar(fr(grp,j)+2*kg,2)}, v{vVA} offset:{(kk>>2)*16384 + (4*(kk&3)+2*kg)*1024}"
def dma_txt(n, i):
    if n < 16: return f"buffer_load_dwordx4 v{vKD}, {sr(SK,4)}, s{sKO+i} offen offset:{1024*i}{fl(cfg.kv_fl)} lds"
    return f"buffer_load_dwordx4 v{vVD}, {sr(SV,4)}, {'s%d' % (sVO+i-1) if i else '0'} offen offset:{1024*i}{fl(cfg.kv_fl)} lds"
def dma_prep(n):
    off = (n & 7) * 16384
    r = [f"s_add_u32 m0, s{sW4}, {off}" if off else f"s_mov_b32 m0, s{sW4}"]
    if 0 < n < 16: r += [f"s_add_u32 s{SK}, s{SK}, 0x4000", f"s_addc_u32 s{SK+1}, s{SK+1}, 0"]
    elif n > 16:
        if (n & 3): r += [f"s_add_u32 s{SV}, s{SV}, 0x10000", f"s_addc_u32 s{SV+1}, s{SV+1}, 0"]
        else: r += [f"s_sub_u32 s{SV}, s{SV}, {3*65536-128}", f"s_subb_u32 s{SV+1}, s{SV+1}, 0"]
    return r
def max_seq(qt, Sa, Sb):
    t, u = vT, vT + 1
    return [f"v_max3_f32 v{t}, v{Sa}, v{Sa+1}, v{Sa+2}", f"v_max3_f32 v{t}, v{t}, v{Sa+3}, v{Sb}",
            f"v_max3_f32 v{t}, v{t}, v{Sb+1}, v{Sb+2}", f"v_max_f32_e32 v{t}, v{t}, v{Sb+3}"] + max_fin(qt, t, u)
def max_fin(qt, t, u):
    return [f"v_mov_b32_e32 v{u}, v{t}", "s_nop 1", f"v_permlane32_swap_b32_e32 v{t}, v{u}", f"v_max_f32_e32 v{t}, v{t}, v{u}",
            f"v_mov_b32_e32 v{u}, v{t}", "s_nop 1", f"v_permlane16_swap_b32_e32 v{t}, v{u}", f"v_max_f32_e32 v{t}, v{t}, v{u}",
            f"v_mul_f32_e64 v{t}, v{t}, -s{sC}", f"v_min_f32_e32 v{vNM+qt}, v{vNM+qt}, v{t}"]
def fma1(S, i, qt): return f"v_fma_f32 v{S+i}, v{S+i}, s{sC}, v{vNM+qt}"
def exp1(S, i): return f"v_exp_f32_e32 v{S+i}, v{S+i}"
def cvt1(d, a): return f"v_cvt_pk_bf16_f32 v{d}, v{a}, v{a+1}"

class It:
    def __init__(s, text, kind, early=0, deps=(), prio=0, dead=None, ctr=None, mf=None):
        s.text, s.kind, s.early, s.deps, s.prio, s.dead, s.ctr = text, kind, early, list(deps), prio, dead, ctr
        s.gap = None; s.mf = mf
        s.cost = {"valu": 1, "exp": 2, "lds": 1, "full": 2, "scalar": 0}[kind]
class Wait(It):
    def __init__(s, lgkm=None, vm=None, **kw):
        It.__init__(s, None, "scalar", **kw); s.tg = {"vm": vm, "lgkm": lgkm}

class Stream:
    def __init__(s):
        s.mf = []; s.items = []; s.gaps = {}
        s.issued = {"lgkm": [], "vm": []}
    def g(s, i): return s.gaps.setdefault(i, dict(sh=[], mem=[], valu=[], bar=False, raw=[]))
    def add(s, it): s.items.append(it); return it
    def fix(s, it, gap):
        it.gap = gap
        s.g(gap)["sh" if it.kind == "scalar" else "mem" if it.kind in ("lds", "full") else "valu"].append(it)
        return it
    def used(s, i):
        G = s.g(i); return sum(x.cost for x in G["mem"] + G["valu"]) + max(0, len(G["sh"]) - 1)
    def run(s, ngaps_extra=400):
        pend = sorted(s.items, key=lambda x: x.prio)
        n = len(s.mf)
        def dist(m, i):
            c = min(i, n - 1) - m
            for k in range(m, i + 1):
                G = s.g(k); c += len(G["sh"]) + len(G["mem"]) + len(G["valu"]) + (8 if G["raw"] and k < i else 0)
            return c
        def ok(x, i):
            return x.early <= i and all(d.gap is not None and d.gap + m <= i for d, m in x.deps) and (x.mf is None or (i > x.mf and dist(x.mf, i) >= 8))
        i = 0
        while pend:
            tailmode = i >= n - 1
            G = s.g(i)
            def take(x): pend.remove(x); s.fix(x, i); assert x.dead is None or i <= x.dead, (x.text, i, x.dead)
            if True:
                placed_full = False
                if s.used(i) == 0 and not G["bar"]:
                    for x in pend:
                        if x.kind == "full" and ok(x, i) and (not G["sh"] or x.text.startswith("ds_")):
                            take(x); placed_full = True; break
                if not G["sh"] and not (placed_full and not G["mem"][0].text.startswith("ds_")):
                    for x in pend:
                        if x.kind == "scalar" and ok(x, i): take(x); break
                if not placed_full:
                    prevx = any(y.text.startswith("ds_write") for y in s.g(i - 1)["mem"])
                    for x in list(pend):
                        if x.kind == "lds" and ok(x, i) and s.used(i) < 2 and not prevx and not G["bar"]: take(x)
                    while True:
                        back = sum(x.cost for x in pend if x.kind in ("valu", "exp") and x.early <= i)
                        budget = 1 if G["bar"] else 3 if back > cfg.backlog else 2
                        free = budget - s.used(i)
                        el = [x for x in pend if x.kind in ("valu", "exp") and ok(x, i) and x.cost <= free]
                        if not el: break
                        ex = [x for x in el if x.kind == "exp"]
                        take(ex[0] if ex else el[0])
            i += 1
            assert i < n + ngaps_extra, [x.text for x in pend][:5]
        s.last = max(s.gaps)
    def emit1(s, x):
        if isinstance(x, Wait):
            w = []
            for c, t in x.tg.items():
                if t is None: continue
                q = s.issued[c]
                w.append(f"{c}cnt({min(len(q) - 1 - q.index(t), 15 if c == 'lgkm' else 63)})")
            e("s_waitcnt " + " ".join(w))
        else:
            e(x.text)
            if x.ctr: s.issued[x.ctr].append(x)
    def emit(s):
        over = 0; line = []
        for i in range(s.last + 1):
            if i < len(s.mf): e(s.mf[i])
            G = s.g(i)
            for x in G["sh"] + G["mem"] + G["valu"]: s.emit1(x)
            for t in G["raw"]: e(t)
            u = s.used(i); over += max(0, u - 2) if i < len(s.mf) else 0
            line.append(("B" if G["bar"] else "." if G["sh"] else "") + "".join({"lds": "r", "full": x.text[:8] == "ds_write" and "x" or x.text[:8] == "buffer_l" and "D" or x.text[:3] == "s_b" and "B" or "S", "valu": "a", "exp": "E"}[x.kind] for x in G["mem"] + G["valu"]))
        if cfg.verbose:
            for k in range(0, len(line), 25): print(k, "|".join(line[k:k + 25]), file=sys.stderr)
        print(f"mfma {len(s.mf)} gaps {s.last+1} overflow slots {over}", file=sys.stderr)

def main_stream(pre_vm):
    S = Stream()
    S.issued["vm"] = list(pre_vm)
    lastdma = {n: pre_vm[k] for n, k in ((1, -9), (2, -5), (3, -1))}
    gstart = {}
    chain_end = {}
    pdone = {}
    lpos = {}
    def l_mfma(qt, kt):
        lpos[(qt, kt)] = len(S.mf)
        S.mf.append(mfma(ar(aL + 4 * qt, 4), ar(aONE, 4), vr(P(qt, kt), 4), "0" if kt == 0 else ar(aL + 4 * qt, 4)))
    sbuf = lambda grp, qt: ACC + 4 * ((3 * grp + qt) % 12)
    for grp in (0, 1):
        gstart[grp] = len(S.mf)
        for ks in range(8): S.mf.append(mf_qk(sbuf(grp, 2), grp, 2, ks))
        chain_end[(grp, 2)] = len(S.mf) - 1
    for grp in range(2, 32):
        gstart[grp] = len(S.mf)
        for qt in range(3):
            for ks in range(8): S.mf.append(mf_qk(sbuf(grp, qt), grp, qt, ks))
            chain_end[(grp, qt)] = len(S.mf) - 1
            if grp & 1: l_mfma(qt, (grp >> 1) - 1)
    for g2 in range(32):
        grp = 32 + g2; ds, kh, dt = g2 >> 3, (g2 >> 2) & 1, g2 & 3
        gstart[grp] = len(S.mf)
        for qt in range(3):
            for j in range(8):
                kk = 8 * kh + j; a = acc(dt, qt)
                S.mf.append(mfma(vr(a, 4), ar(fr(grp, j), 4), vr(P(qt, kk), 4), "0" if kk == 0 else vr(a, 4)))
            chain_end[(grp, qt)] = len(S.mf) - 1
            if g2 == 1: l_mfma(qt, 15)
    gstart[64] = len(S.mf)
    bars = []
    for t in range(1, 16): bars.append((gstart[2 * t - 1], t, t - 1))
    bars.append((gstart[31], 17, 15))
    for u in range(1, 8): bars.append((gstart[32 + 4 * u - 1], 17 + 2 * u, 15 + 2 * u))
    baritems = []; endwait = {}
    for gp, pub, freed in bars:
        w = Wait(); S.fix(w, gp - 1); endwait[gp] = w
        b = It("s_barrier", "scalar"); S.fix(b, gp); S.g(gp)["bar"] = True
        baritems.append((w, b, pub, freed))
    bargaps = {b[0] for b in bars}
    for grp in range(2, 64):
        g0, g1 = gstart[grp - 1], gstart[grp]
        first = g0 + (1 if g0 in bargaps else 0)
        if grp < 32:
            txt = [rd_k(grp, ks) for ks in range(8)]
            if grp == 2: pos = [first + k // 2 for k in range(8)]
            else: pos = [first + (k * 5) // 2 for k in range(8)]
            if grp % 8 == 0:
                for r in (0, 1): S.fix(It(f"v_xor_b32_e32 v{vKA+r}, 0x10000, v{vKA+r}", "valu"), g0 - 2 + r)
        else:
            txt = [rd_v(grp, j, kg) for j in range(8) for kg in (0, 1)]
            offs = [0, 0, 1, 2, 5, 6, 6, 7, 10, 11, 11, 12, 15, 16, 16, 17]
            pos = [g0 + 1 + o for o in offs]
            if grp > 32:
                x = (((grp ^ (grp - 1)) & 3) << 5) | (0x10000 if (grp & 7) == 0 else 0)
                S.fix(It(f"v_xor_b32_e32 v{vVA}, {hex(x)}, v{vVA}", "valu"), g0 - 1)
        its = [S.fix(It(t, "lds", ctr="lgkm"), p) for t, p in zip(txt, pos)]
        if grp == 2:
            S.fix(Wait(its[3]), g1 - 1); S.fix(Wait(its[-1]), g1 + 2)
        elif g1 in endwait: endwait[g1].tg["lgkm"] = its[-1]
        else: S.fix(Wait(its[-1]), g1 - 1)
    prev = None
    n1 = 12 + cfg.lead
    a0, a1 = gstart[2], gstart[32]
    for n in range(4, 32):
        need = max(n - 8, 0)
        gate = next(b for (w, b, pub, freed) in baritems if freed >= need)
        k = n - 4
        tgt = a0 + (a1 - a0) * k // n1 if k < n1 else a1 + (k - n1) * 48
        step = ((a1 - a0) // n1 if k < n1 else 48) // 4
        for t in dma_prep(n):
            prev = S.add(It(t, "scalar", early=tgt - 6, deps=[(prev, 1)] if prev else [], prio=tgt - 6))
        for i in range(4):
            prev = S.add(It(dma_txt(n, i), "full", early=tgt + i * step, deps=[(prev, 1 if (i == 0 or n < 23) else cfg.dstep2), (gate, 1)], prio=max(tgt + i * step, gate.gap), ctr="vm"))
        lastdma[n] = prev
    for (w, b, pub, freed) in baritems:
        w.tg["vm"] = lastdma[pub]
        if pub > 3: lastdma[pub].dead = b.gap - 2
    def soft(grp, qt, extra=()):
        Sb = sbuf(grp, qt); e0 = chain_end[(grp, qt)] + 1; kt, kg = grp >> 1, grp & 1
        reuse = gstart[grp + 4] + 8 * qt - 1 if grp + 4 < 32 else gstart[32 + (grp & 3)] + 8 * qt - 1
        f = [S.add(It(fma1(Sb, i, qt), "valu", e0, extra, prio=e0 + 0.1 * i, mf=e0 - 1)) for i in range(4)]
        x = [S.add(It(exp1(Sb, i), "exp", e0, [(f[i], 0)], prio=e0 + 0.1 * i)) for i in range(4)]
        dead = min(reuse, lpos[(qt, kt)] - 2)
        for h in (0, 1):
            S.add(It(cvt1(P(qt, kt) + 2 * kg + h, Sb + 2 * h), "valu", e0, [(x[2 * h], 1), (x[2 * h + 1], 1)], prio=e0 + 6 + h, dead=dead))
    prev = None
    e0 = chain_end[(1, 2)] + 1
    for t in max_seq(2, sbuf(0, 2), sbuf(1, 2)):
        if t.startswith("s_nop"): continue
        perm = "permlane" in t
        prev = S.add(It(t, "exp" if perm else "valu", e0, [(prev, 2 if perm else 0)] if prev else [], prio=0, mf=e0 - 1))
    soft(0, 2, [(prev, 0)]); soft(1, 2, [(prev, 0)])
    for grp in range(2, 32):
        for qt in range(3): soft(grp, qt)
    e0 = lpos[(2, 15)] + 1
    rds = [S.add(It(f"v_accvgpr_read_b32 v{vIL+qt}, a{aL+4*qt}", "valu", e0, prio=e0, mf=e0 - 1)) for qt in range(3)]
    mx = S.add(It(f"v_max3_f32 v{vT}, v{vIL}, v{vIL+1}, v{vIL+2}", "valu", e0, [(r, 0) for r in rds], prio=e0 + 1))
    rc = [S.add(It(f"v_rcp_f32_e32 v{vIL+qt}, v{vIL+qt}", "exp", e0, [(mx, 0)], prio=e0 + 2)) for qt in range(3)]
    cm = S.add(It(f"v_cmp_nlt_f32_e64 {sr(sFLAG,2)}, v{vT}, s{sLIM}", "valu", e0, [(mx, 0)], prio=e0 + 3))
    c1 = S.add(It(f"v_mov_b32_e32 v{vT}, s{sFLAG}", "valu", e0, [(cm, 2)], prio=e0 + 4))
    c2 = S.add(It(f"v_or_b32_e32 v{vT}, s{sFLAG+1}, v{vT}", "valu", e0, [(c1, 0)], prio=e0 + 5))
    c3 = S.add(It(f"v_mov_b32_e32 v{vT+1}, s{sQL}", "valu", e0, prio=e0 + 5))
    fw = S.add(It(f"ds_write_b32 v{vT+1}, v{vT}", "full", e0, [(c2, 1), (c3, 1)], prio=e0 + 6, ctr="lgkm", dead=gstart[38]))
    prevw = None; prevst = [None] * 6; prevrb = []
    for ds in range(4):
        for dt in range(4):
            grp = 32 + 8 * ds + 4 + dt
            xo = None
            if ds or dt:
                x = ((dt ^ (dt - 1)) & 3) << 5
                xo = S.add(It(f"v_xor_b32_e32 v{vSW}, {hex(x)}, v{vSW}", "valu", gstart[grp], [(prevw, 1)], prio=gstart[grp]))
            for qt in range(3):
                a = acc(dt, qt); e0 = chain_end[(grp, qt)] + 1
                last = ds == 3 and dt == 3 and qt == 2
                m = [S.add(It(f"v_mul_f32_e32 v{a+i}, v{a+i}, v{vIL+qt}", "valu", e0, [(rc[qt], 1)], prio=e0 + 0.1 * i, mf=e0 - 1)) for i in range(4)]
                c0 = S.add(It(cvt1(a, a), "valu", e0, [(m[0], 0), (m[1], 0)], prio=e0 + 1))
                c1 = S.add(It(cvt1(a + 1, a + 2), "valu", e0, [(m[2], 0), (m[3], 0), (c0, 0)], prio=e0 + 1.1))
                dead = gstart[grp + 4] + 8 * qt - 1 if ds < 3 else None
                prevw = S.add(It(f"ds_write_b64 v{vSW}, {vr(a,2)} offset:{qt*2048}", "full", e0, [(c1, 1)] + ([(xo, 1)] if xo else []) + ([(prevw, 1)] if prevw else []) + [(r, 1) for r in prevrb[:6 * ds]],
                                 prio=e0 - 50, ctr="lgkm", dead=dead))
                if dt == 3:
                    for h in (0, 1):
                        rb = 2 * qt + h
                        r = S.add(It(f"ds_read_b128 {ar(aRB+4*rb,4)}, v{vSR} offset:{rb*1024}", "lds", e0, [(prevw, 1)] + ([(prevst[rb], 2)] if prevst[rb] else []), prio=e0, ctr="lgkm"))
                        prevrb.append(r)
                        w = S.add(Wait(r, deps=[(r, 1 if last else 5)], prio=e0))
                        srd, so = (SO, rb) if qt < 2 else (SO2, h)
                        prevst[rb] = S.add(It(f"buffer_store_dwordx4 {ar(aRB+4*rb,4)}, v{vST}, {sr(srd,4)}, {'s%d' % (sSO+so-1) if so else '0'} offen offset:{ds*128}{fl(cfg.o_fl)}",
                                              "full", e0, [(w, 1)], prio=e0 - 20, ctr="vm"))
    S.g(len(S.mf) - 1)["raw"].append("s_nop 7")
    for i, g in ((4, 2), (5, 32), (6, 40), (7, 56)):
        t = stamp_txt(i)
        if t: S.g(gstart[g] - 1)["raw"].append(t)
    S.run(); S.emit()

def prologue():
    stamp(0)
    e(f"""
    s_cmp_ge_u32 s2, 256
    s_cbranch_scc1 L_exit
    s_load_dwordx8 {sr(sPTR,8)}, s[0:1], 0
    v_lshrrev_b32_e32 v1, 6, v0
    s_mov_b32 s{sRUN}, 0
    v_readfirstlane_b32 s{sW}, v1
    """)
    if cfg.stamps: e(f"s_load_dwordx4 {sr(sPTR+8,4)}, s[0:1], 32")
    if cfg.touch:
        e(f"""
        s_getpc_b64 {sr(sPC,2)}
        L_pc:
        v_lshlrev_b32_e32 v2, 7, v0
        v_add_u32_e32 v3, 0x8000, v2
        v_min_u32_e32 v2, L_exit-L_pc, v2
        v_min_u32_e32 v3, L_exit-L_pc, v3
        global_load_dword v4, v2, {sr(sPC,2)}
        global_load_dword v5, v3, {sr(sPC,2)}
        """)
    for qt in range(3): e(f"v_mov_b32_e32 v{vNM+qt}, 0x7f800000")
    L = 8
    e("L_start:")
    e(f"""
    v_mbcnt_lo_u32_b32 v{L}, -1, 0
    v_mbcnt_hi_u32_b32 v{L}, -1, v{L}
    s_lshr_b32 s{sHEAD}, s2, 4
    s_lshl_b32 s{sHEAD}, s{sHEAD}, 3
    s_and_b32 s3, s2, 7
    s_add_u32 s{sHEAD}, s{sHEAD}, s3
    s_bfe_u32 s3, s2, 0x10003
    s_lshl_b32 s3, s3, 2
    s_add_u32 s3, s3, s{sW}
    s_cmp_eq_u32 s3, 7
    s_cselect_b32 s{sSHORT}, 0, -1
    s_mul_i32 s3, s3, 24576
    s_mul_i32 s{sT}, s{sHEAD}, {QHEAD}
    s_add_u32 s{sT}, s{sT}, s3
    s_lshl_b32 s{sT+1}, s{sHEAD}, 18
    s_lshl_b32 s{sW4}, s{sW}, 12
    v_lshrrev_b32_e32 v9, 3, v{L}
    v_and_b32_e32 v10, 7, v{L}
    v_lshrrev_b32_e32 v11, 1, v9
    v_xor_b32_e32 v12, v10, v11
    v_lshlrev_b32_e32 v12, 4, v12
    v_lshl_add_u32 v12, v9, 9, v12
    v_xor_b32_e32 v13, 0x1040, v12
    s_and_b32 s3, s{sW}, 1
    s_lshl_b32 s3, s3, 6
    s_or_b32 s3, s3, s{sW4}
    v_xor_b32_e32 v{vKD}, s3, v12
    s_mul_i32 s{sQL}, s{sW}, 24576
    s_add_u32 s{sQL}, s{sQL}, 0x10000
    """)
    for lc in range(4): e(f"s_mov_b32 s{sKO+lc}, {BIAS - 896*lc}")
    e(f"""
    s_mov_b32 s{SK+2}, {BIAS + 16384}
    s_mov_b32 s{SK+3}, 0x20000
    s_mov_b32 s{SQ+2}, {BIAS + 8192}
    s_mov_b32 s{SQ+3}, 0x20000
    s_mov_b32 m0, s{sW4}
    s_waitcnt lgkmcnt(0)
    """)
    stamp(1)
    e(f"""
    s_add_u32 s{SK}, s{sPTR+2}, s{sT+1}
    s_addc_u32 s{SK+1}, s{sPTR+3}, 0
    s_sub_u32 s{SK}, s{SK}, {BIAS}
    s_subb_u32 s{SK+1}, s{SK+1}, 0
    """)
    vm = []
    def vmem(t): e(t); vm.append(It(t, "full"))
    for i in range(4): vmem(dma_txt(0, i))
    e(f"""
    s_add_u32 s{SQ}, s{sPTR}, s{sT}
    s_addc_u32 s{SQ+1}, s{sPTR+1}, 0
    s_sub_u32 s{SQ}, s{SQ}, {BIAS}
    s_subb_u32 s{SQ+1}, s{SQ+1}, 0
    """)
    rest = f"""
    s_add_u32 s{SV}, s{sPTR+4}, s{sT+1}
    s_addc_u32 s{SV+1}, s{sPTR+5}, 0
    s_mov_b32 s{SV+2}, 65152
    s_mov_b32 s{SV+3}, 0x20000
    s_add_u32 s{SO}, s{sPTR+6}, s{sT}
    s_addc_u32 s{SO+1}, s{sPTR+7}, 0
    s_mov_b32 s{SO+2}, 16384
    s_mov_b32 s{SO+3}, 0x20000
    s_add_u32 s{SO2}, s{SO}, 16384
    s_addc_u32 s{SO2+1}, s{SO+1}, 0
    s_and_b32 s{SO2+2}, s{sSHORT}, 8192
    s_mov_b32 s{SO2+3}, 0x20000
    s_mov_b32 s{sVO}, 3072
    s_mov_b32 s{sVO+1}, 6144
    s_mov_b32 s{sVO+2}, 9216
    s_mov_b32 s{sSO}, 4096
    s_mov_b32 s{sSO+1}, 8192
    s_mov_b32 s{sSO+2}, 12288
    s_mov_b32 s{sC}, {f2u(1.4426950408889634 / 16)}
    s_mov_b32 s{sLIM}, {f2u(2.0 ** cfg.lim)}
    v_lshlrev_b32_e32 v14, 1, v11
    v_xor_b32_e32 v14, v14, v10
    v_lshlrev_b32_e32 v14, 4, v14
    v_lshl_add_u32 v14, v9, 9, v14
    s_lshl_b32 s3, s{sW}, 14
    v_add_u32_e32 v{vVD}, s3, v14
    v_lshlrev_b32_e32 v14, 4, v10
    v_lshl_add_u32 v{vST}, v9, 9, v14
    s_mul_i32 s3, s{sW}, 6144
    s_add_u32 s3, s3, {STAGE}
    v_xor_b32_e32 v14, v9, v10
    v_lshlrev_b32_e32 v14, 4, v14
    v_lshl_add_u32 v14, v9, 7, v14
    v_add_u32_e32 v{vSR}, s3, v14
    v_lshrrev_b32_e32 v15, 5, v{L}
    v_xor_b32_e32 v14, v15, v10
    v_lshlrev_b32_e32 v14, 4, v14
    v_and_b32_e32 v16, 15, v{L}
    v_lshl_add_u32 v14, v16, 7, v14
    v_bfe_u32 v17, v{L}, 4, 1
    v_lshl_add_u32 v14, v17, 3, v14
    v_add_u32_e32 v{vSW}, s3, v14
    v_bfe_u32 v14, v{L}, 2, 3
    v_lshlrev_b32_e32 v18, 10, v15
    v_lshl_add_u32 v18, v14, 7, v18
    v_lshrrev_b32_e32 v14, 1, v14
    v_lshl_add_u32 v18, v14, 5, v18
    v_and_b32_e32 v14, 3, v{L}
    v_lshl_add_u32 v{vVA}, v14, 3, v18
    v_bfe_u32 v14, v{L}, 3, 1
    v_lshlrev_b32_e32 v18, 12, v14
    v_lshl_add_u32 v18, v10, 7, v18
    v_bfe_u32 v14, v{L}, 1, 3
    v_lshrrev_b32_e32 v19, 4, v{L}
    v_xor_b32_e32 v14, v14, v19
    v_lshl_add_u32 v{vKA}, v14, 4, v18
    v_xor_b32_e32 v{vKA+1}, 64, v{vKA}
    v_add_u32_e32 v20, s{sQL}, v{vKA}
    v_add_u32_e32 v21, s{sQL}, v{vKA+1}
    v_mov_b32_e32 v14, 0x3f803f80
    v_accvgpr_write_b32 a{aONE}, v14
    v_accvgpr_write_b32 a{aONE+1}, v14
    v_accvgpr_write_b32 a{aONE+2}, v14
    v_accvgpr_write_b32 a{aONE+3}, v14
    """
    for qt in range(3):
        if qt: e(f"s_add_u32 s{SQ}, s{SQ}, 8192\ns_addc_u32 s{SQ+1}, s{SQ+1}, 0")
        if qt == 2: e(f"s_and_b32 s{SQ+2}, s{SQ+2}, s{sSHORT}")
        for par in (0, 1):
            e(f"s_add_u32 m0, s{sQL}, {(2*qt+par)*4096}\ns_nop 0")
            for lc in range(4):
                vmem(f"buffer_load_dwordx4 v{12+par}, {sr(SQ,4)}, s{sKO+lc} offen offset:{1024*lc}{fl(cfg.q_fl)} lds")
        if qt == 0: e(rest)
    stamp(2)
    def wait_vm(k): e(f"s_waitcnt vmcnt({len(vm) - k})")
    def q_reads(qt):
        for ks in range(8): e(f"ds_read_b128 {ar(Qf(qt,ks),4)}, v{20+(ks&1)} offset:{qt*8192 + (ks>>1)*1024}")
    def k_piece(n):
        for t in dma_prep(n): e(t)
        for i in range(4): vmem(dma_txt(n, i))
    sb = lambda grp, qt: ACC + 4 * ((3 * grp + qt) % 12)
    wait_vm(4); e("s_barrier")
    for grp in (0, 1):
        for ks in range(8): e(rd_k(grp, ks))
    k_piece(1)
    for qt in (0, 1):
        wait_vm(12 + 8 * qt); q_reads(qt); k_piece(2 + qt); e("s_waitcnt lgkmcnt(0)")
        for grp in (0, 1):
            for ks in range(8): e(mf_qk(sb(grp, qt), grp, qt, ks))
        e("s_nop 7")
        for t in max_seq(qt, sb(0, qt), sb(1, qt)): e(t)
        for grp in (0, 1):
            for i in range(4): e(fma1(sb(grp, qt), i, qt))
            for i in range(4): e(exp1(sb(grp, qt), i))
        for grp in (0, 1):
            for h in (0, 1): e(cvt1(P(qt, 0) + 2 * grp + h, sb(grp, qt) + 2 * h))
    e(f"s_lshl_b32 s{sQL}, s{sW}, 2\ns_add_u32 s{sQL}, s{sQL}, {FLAGS}")
    wait_vm(28); stamp(3); q_reads(2); e("s_waitcnt lgkmcnt(0)")
    return vm

def finish():
    stamp(8)
    e(f"""
    v_mov_b32_e32 v{vT}, {FLAGS}
    ds_read_b128 v[0:3], v{vT}
    s_waitcnt lgkmcnt(0)
    v_or3_b32 v0, v0, v1, v2
    v_or_b32_e32 v0, v0, v3
    s_nop 0
    v_readfirstlane_b32 s3, v0
    s_cmp_eq_u32 s3, 0
    s_cbranch_scc1 L_done
    s_cmp_lg_u32 s{sRUN}, 0
    s_cbranch_scc1 L_done
    """)
    e(f"""
    s_mov_b32 s{sRUN}, 1
    s_lshl_b32 s3, s{sHEAD}, 18
    s_add_u32 s{SF}, s{sPTR+2}, s3
    s_addc_u32 s{SF+1}, s{sPTR+3}, 0
    s_mov_b32 s{SF+2}, {KHEAD}
    s_mov_b32 s{SF+3}, 0x20000
    v_mbcnt_lo_u32_b32 v8, -1, 0
    v_mbcnt_hi_u32_b32 v8, -1, v8
    v_and_b32_e32 v9, 15, v8
    v_lshrrev_b32_e32 v8, 4, v8
    v_lshlrev_b32_e32 v8, 4, v8
    v_lshl_add_u32 v8, v9, 9, v8
    v_mov_b32_e32 v4, 0xff800000
    v_mov_b32_e32 v5, 0xff800000
    v_mov_b32_e32 v6, 0xff800000
    s_mov_b32 s3, 0
    L_fb:
    """)
    for ks in range(8): e(f"buffer_load_dwordx4 {vr(16+4*ks,4)}, v8, {sr(SF,4)}, 0 offen offset:{64*ks}")
    e("v_add_u32_e32 v8, 0x2000, v8\ns_waitcnt vmcnt(0)")
    for qt in range(3):
        for ks in range(8): e(mfma(vr(48 + 4 * qt, 4), vr(16 + 4 * ks, 4), ar(Qf(qt, ks), 4), "0" if ks == 0 else vr(48 + 4 * qt, 4)))
    e("s_nop 7")
    for qt in range(3):
        b = 48 + 4 * qt
        e(f"v_max3_f32 v{4+qt}, v{4+qt}, v{b}, v{b+1}\nv_max3_f32 v{4+qt}, v{4+qt}, v{b+2}, v{b+3}")
    e("s_add_u32 s3, s3, 1\ns_cmp_lt_u32 s3, 32\ns_cbranch_scc1 L_fb")
    for qt in range(3):
        for t in max_fin(qt, 4 + qt, 7): e(t)
    e("s_barrier\ns_branch L_start")
    e("L_done:")
    if cfg.stamps or cfg.diag >= 0:
        e("s_waitcnt vmcnt(0)"); stamp(9)
    if cfg.stamps:
        e(f"""
        s_mov_b32 s{SD}, s{sPTR+10}
        s_mov_b32 s{SD+1}, s{sPTR+11}
        s_mov_b32 s{SD+2}, 0x100000
        s_mov_b32 s{SD+3}, 0x20000
        s_lshl_b32 s3, s2, 2
        s_add_u32 s3, s3, s{sW}
        s_lshl_b32 s3, s3, 7
        v_mov_b32_e32 v0, s3
        s_getreg_b32 s{sSTT}, hwreg(HW_REG_XCC_ID)
        s_getreg_b32 s{sSTT+1}, hwreg(HW_REG_HW_ID)
        """)
        for i in range(22):
            e(f"v_mov_b32_e32 v1, s{sCY+i}\nbuffer_store_dword v1, v0, {sr(SD,4)}, 0 offen offset:{4*i}\ns_nop 1")
    if cfg.diag >= 0:
        a, b = (cfg.diag % 100) // 10, cfg.diag % 10
        base = sCY if cfg.diag >= 100 else sRT
        e(f"s_sub_u32 s3, s{base+b}, s{base+a}")
        if cfg.diag >= 100: e("s_mul_hi_u32 s3, s3, 0x19999999")
        if cfg.diagmul != 1: e(f"s_mul_i32 s3, s3, {cfg.diagmul}")
        if cfg.diagwg >= 0: e(f"s_cmp_eq_u32 s2, {cfg.diagwg}\ns_cselect_b32 s3, s3, 0")
        e(f"s_min_u32 s3, s3, 20000\ns_add_u32 s3, s3, {cfg.diagbase}\nL_spin:\ns_memrealtime {sr(sSTT,2)}\ns_waitcnt lgkmcnt(0)\ns_sub_u32 s{sT}, s{sSTT}, s{sRT}\ns_cmp_lt_u32 s{sT}, s3\ns_cbranch_scc1 L_spin")
    e("L_exit:\ns_endpgm")

HEAD = open("standalone__mha_softmax__near_ridge.s.ref").read().split("\n")[:9]
def main():
    ap = argparse.ArgumentParser()
    ap.add_argument("-o", default="standalone__mha_softmax__near_ridge.s")
    ap.add_argument("opts", nargs="*")
    a = ap.parse_args()
    for o in a.opts:
        k, v = o.split("=")
        assert hasattr(cfg, k), k
        setattr(cfg, k, v if isinstance(getattr(cfg, k), str) else type(getattr(cfg, k))(eval(v)))
    e(f"{KN}:")
    vm = prologue()
    main_stream(vm)
    finish()
    txt = "\n".join(HEAD) + "\n; @launch grid=(256,1,1) block=(256,1,1) lds=163840\n"
    txt += f'.amdgcn_target "amdgcn-amd-amdhsa--gfx950"\n.text\n.globl {KN}\n.p2align 8\n.type {KN},@function\n'
    txt += "\n".join(l if l.endswith(":") or l.startswith(".") else "    " + l for l in out) + "\n"
    txt += f""".section .rodata,"a"
.p2align 6
.amdhsa_kernel {KN}
  .amdhsa_next_free_vgpr 512
  .amdhsa_next_free_sgpr 102
  .amdhsa_accum_offset 256
  .amdhsa_group_segment_fixed_size 0
  .amdhsa_kernarg_size 48
  .amdhsa_user_sgpr_count 2
  .amdhsa_user_sgpr_kernarg_segment_ptr 1
  .amdhsa_system_sgpr_workgroup_id_x 1
.end_amdhsa_kernel
"""
    open(a.o, "w").write(txt)
main()
```

```python
import sys, struct, argparse

KN = "standalone__mha_softmax__near_ridge_kernel"
BIAS = 4096
QHEAD = 368 * 512
KHEAD = 512 * 512
def f2u(x): return struct.unpack("<I", struct.pack("<f", x))[0]

SQ, SK, SV, SO, SO2 = 4, 8, 12, 16, 20
sKO = 24
sVO = 28
sW, sW4, sC, sRUN, sQL, sHEAD, sSHORT = 31, 32, 33, 34, 35, 36, 37
sT = 38
sSO = 44
sLIM = 47
sFLAG = 48
sPC = 50
sPTR = 52
SF = 64
sCY, sRT, sSTT, SD = 70, 80, 90, 96
def P(qt, kt): return 64 * qt + 4 * kt
ACC = 192
def acc(dt, qt): return ACC + 12 * dt + 4 * qt
vKA, vKD, vVD, vVA, vSW, vSR, vST = 240, 242, 243, 244, 245, 246, 247
vNM, vIL, vT = 248, 251, 254
vPF = 252
def Qf(qt, ks): return 32 * qt + 4 * ks
RING = 96
def fr(grp, j): return RING + 32 * (grp & 1) + 4 * j
aL, aONE, aRB = 160, 172, 176
STAGE = 131072
FLAGS = 155648

def vr(b, n): return f"v[{b}:{b+n-1}]"
def ar(b, n): return f"a[{b}:{b+n-1}]"
def sr(b, n): return f"s[{b}:{b+n-1}]"

class Cfg:
    stamps = False
    q_fl = 'nt'
    kv_fl = 'nt'
    o_fl = 'sc0_sc1'
    kspan = 5
    vpat = 5
    stime = ''
    pfn = 0
    pf0 = 6
    pf1 = 36
    pf = ''
    pf_fl = ''
    sstep = 28
    lead = 8
    backlog = 24
    dstep2 = 6
    touch = True
    lim = 60
    verbose = False
    diagwg = -1
    diagmul = 1
    diagbase = 5000
    diag = -1
cfg = Cfg()
out = []
def e(s):
    for l in s.split("\n"):
        l = l.strip()
        if l: out.append(l)
def fl(x): return " " + x.replace("_", " ") if x else ""

def stamp_txt(i):
    if cfg.stamps or (cfg.diag >= 0 and i in (0, (cfg.diag % 100) // 10, cfg.diag % 10)):
        return f"s_memtime {sr(sSTT,2)}\ns_memrealtime {sr(sSTT+2,2)}\ns_waitcnt lgkmcnt(0)\ns_mov_b32 s{sCY+i}, s{sSTT}\ns_mov_b32 s{sRT+i}, s{sSTT+2}"
    return ""
def stamp(i): e(stamp_txt(i))

def mfma(d, a, b, c): return f"v_mfma_f32_16x16x32_bf16 {d}, {a}, {b}, {c}"
def mf_qk(S, grp, qt, ks): return mfma(vr(S, 4), ar(fr(grp, ks), 4), ar(Qf(qt, ks), 4), "0" if ks == 0 else vr(S, 4))
def rd_k(grp, ks):
    t, kg = grp >> 1, grp & 1
    return f"ds_read_b128 {ar(fr(grp,ks),4)}, v{vKA+(ks&1)} offset:{(t&3)*16384 + kg*8192 + (ks>>1)*1024}"
def rd_v(grp, j, kg):
    kh = (grp >> 2) & 1; kk = 8 * kh + j
    return f"ds_read_b64_tr_b16 {ar(fr(grp,j)+2*kg,2)}, v{vVA} offset:{(kk>>2)*16384 + (4*(kk&3)+2*kg)*1024}"
def dma_txt(n, i):
    if n < 16: return f"buffer_load_dwordx4 v{vKD}, {sr(SK,4)}, s{sKO+i} offen offset:{1024*i}{fl(cfg.kv_fl)} lds"
    return f"buffer_load_dwordx4 v{vVD}, {sr(SV,4)}, {'s%d' % (sVO+i-1) if i else '0'} offen offset:{1024*i}{fl(cfg.kv_fl)} lds"
def dma_prep(n):
    off = (n & 7) * 16384
    r = [f"s_add_u32 m0, s{sW4}, {off}" if off else f"s_mov_b32 m0, s{sW4}"]
    if 0 < n < 16: r += [f"s_add_u32 s{SK}, s{SK}, 0x4000", f"s_addc_u32 s{SK+1}, s{SK+1}, 0"]
    elif n > 16:
        if (n & 3): r += [f"s_add_u32 s{SV}, s{SV}, 0x10000", f"s_addc_u32 s{SV+1}, s{SV+1}, 0"]
        else: r += [f"s_sub_u32 s{SV}, s{SV}, {3*65536-128}", f"s_subb_u32 s{SV+1}, s{SV+1}, 0"]
    return r
def max_seq(qt, Sa, Sb):
    t, u = vT, vT + 1
    return [f"v_max3_f32 v{t}, v{Sa}, v{Sa+1}, v{Sa+2}", f"v_max3_f32 v{t}, v{t}, v{Sa+3}, v{Sb}",
            f"v_max3_f32 v{t}, v{t}, v{Sb+1}, v{Sb+2}", f"v_max_f32_e32 v{t}, v{t}, v{Sb+3}"] + max_fin(qt, t, u)
def max_fin(qt, t, u):
    return [f"v_mov_b32_e32 v{u}, v{t}", "s_nop 1", f"v_permlane32_swap_b32_e32 v{t}, v{u}", f"v_max_f32_e32 v{t}, v{t}, v{u}",
            f"v_mov_b32_e32 v{u}, v{t}", "s_nop 1", f"v_permlane16_swap_b32_e32 v{t}, v{u}", f"v_max_f32_e32 v{t}, v{t}, v{u}",
            f"v_mul_f32_e64 v{t}, v{t}, -s{sC}", f"v_min_f32_e32 v{vNM+qt}, v{vNM+qt}, v{t}"]
def fma1(S, i, qt): return f"v_fma_f32 v{S+i}, v{S+i}, s{sC}, v{vNM+qt}"
def exp1(S, i): return f"v_exp_f32_e32 v{S+i}, v{S+i}"
def cvt1(d, a): return f"v_cvt_pk_bf16_f32 v{d}, v{a}, v{a+1}"

class It:
    def __init__(s, text, kind, early=0, deps=(), prio=0, dead=None, ctr=None, mf=None):
        s.text, s.kind, s.early, s.deps, s.prio, s.dead, s.ctr = text, kind, early, list(deps), prio, dead, ctr
        s.gap = None; s.mf = mf
        s.cost = {"valu": 1, "exp": 2, "lds": 1, "full": 2, "scalar": 0}[kind]
class Wait(It):
    def __init__(s, lgkm=None, vm=None, **kw):
        It.__init__(s, None, "scalar", **kw); s.tg = {"vm": vm, "lgkm": lgkm}

class Stream:
    def __init__(s):
        s.mf = []; s.items = []; s.gaps = {}
        s.issued = {"lgkm": [], "vm": []}
    def g(s, i): return s.gaps.setdefault(i, dict(sh=[], mem=[], valu=[], bar=False, raw=[]))
    def add(s, it): s.items.append(it); return it
    def fix(s, it, gap):
        it.gap = gap
        s.g(gap)["sh" if it.kind == "scalar" else "mem" if it.kind in ("lds", "full") else "valu"].append(it)
        return it
    def used(s, i):
        G = s.g(i); return sum(x.cost for x in G["mem"] + G["valu"]) + max(0, len(G["sh"]) - 1)
    def run(s, ngaps_extra=400):
        pend = sorted(s.items, key=lambda x: x.prio)
        n = len(s.mf)
        def dist(m, i):
            c = min(i, n - 1) - m
            for k in range(m, i + 1):
                G = s.g(k); c += len(G["sh"]) + len(G["mem"]) + len(G["valu"]) + (8 if G["raw"] and k < i else 0)
            return c
        def ok(x, i):
            return x.early <= i and all(d.gap is not None and d.gap + m <= i for d, m in x.deps) and (x.mf is None or (i > x.mf and dist(x.mf, i) >= 8))
        i = 0
        while pend:
            tailmode = i >= n - 1
            G = s.g(i)
            def take(x): pend.remove(x); s.fix(x, i); assert x.dead is None or i <= x.dead, (x.text, i, x.dead)
            if True:
                placed_full = False
                if s.used(i) == 0 and not G["bar"]:
                    for x in pend:
                        if x.kind == "full" and ok(x, i) and (not G["sh"] or x.text.startswith("ds_")):
                            take(x); placed_full = True; break
                if not G["sh"] and not (placed_full and not G["mem"][0].text.startswith("ds_")):
                    for x in pend:
                        if x.kind == "scalar" and ok(x, i): take(x); break
                if not placed_full:
                    prevx = any(y.text.startswith("ds_write") for y in s.g(i - 1)["mem"])
                    for x in list(pend):
                        if x.kind == "lds" and ok(x, i) and s.used(i) < 2 and not prevx and not G["bar"]: take(x)
                    while True:
                        back = sum(x.cost for x in pend if x.kind in ("valu", "exp") and x.early <= i)
                        budget = 1 if G["bar"] else 3 if back > cfg.backlog else 2
                        free = budget - s.used(i)
                        el = [x for x in pend if x.kind in ("valu", "exp") and ok(x, i) and x.cost <= free]
                        if not el: break
                        ex = [x for x in el if x.kind == "exp"]
                        take(ex[0] if ex else el[0])
            i += 1
            assert i < n + ngaps_extra, [x.text for x in pend][:5]
        s.last = max(s.gaps)
    def emit1(s, x):
        if isinstance(x, Wait):
            w = []
            for c, t in x.tg.items():
                if t is None: continue
                q = s.issued[c]
                w.append(f"{c}cnt({min(len(q) - 1 - q.index(t), 15 if c == 'lgkm' else 63)})")
            e("s_waitcnt " + " ".join(w))
        else:
            e(x.text)
            if x.ctr: s.issued[x.ctr].append(x)
    def emit(s):
        over = 0; line = []
        for i in range(s.last + 1):
            if i < len(s.mf): e(s.mf[i])
            G = s.g(i)
            for x in G["sh"] + G["mem"] + G["valu"]: s.emit1(x)
            for t in G["raw"]: e(t)
            u = s.used(i); over += max(0, u - 2) if i < len(s.mf) else 0
            line.append(("B" if G["bar"] else "." if G["sh"] else "") + "".join({"lds": "r", "full": x.text[:8] == "ds_write" and "x" or x.text[:8] == "buffer_l" and "D" or x.text[:3] == "s_b" and "B" or "S", "valu": "a", "exp": "E"}[x.kind] for x in G["mem"] + G["valu"]))
        if cfg.verbose:
            for k in range(0, len(line), 25): print(k, "|".join(line[k:k + 25]), file=sys.stderr)
        print(f"mfma {len(s.mf)} gaps {s.last+1} overflow slots {over}", file=sys.stderr)

def main_stream(pre_vm):
    S = Stream()
    S.issued["vm"] = list(pre_vm)
    lastdma = {n: pre_vm[k] for n, k in ((1, -9), (2, -5), (3, -1))}
    gstart = {}
    chain_end = {}
    pdone = {}
    lpos = {}
    def l_mfma(qt, kt):
        lpos[(qt, kt)] = len(S.mf)
        S.mf.append(mfma(ar(aL + 4 * qt, 4), ar(aONE, 4), vr(P(qt, kt), 4), "0" if kt == 0 else ar(aL + 4 * qt, 4)))
    sbuf = lambda grp, qt: ACC + 4 * ((3 * grp + qt) % 12)
    for grp in (0, 1):
        gstart[grp] = len(S.mf)
        for ks in range(8): S.mf.append(mf_qk(sbuf(grp, 2), grp, 2, ks))
        chain_end[(grp, 2)] = len(S.mf) - 1
    for grp in range(2, 32):
        gstart[grp] = len(S.mf)
        for qt in range(3):
            for ks in range(8): S.mf.append(mf_qk(sbuf(grp, qt), grp, qt, ks))
            chain_end[(grp, qt)] = len(S.mf) - 1
            if grp & 1: l_mfma(qt, (grp >> 1) - 1)
    for g2 in range(32):
        grp = 32 + g2; ds, kh, dt = g2 >> 3, (g2 >> 2) & 1, g2 & 3
        gstart[grp] = len(S.mf)
        for qt in range(3):
            for j in range(8):
                kk = 8 * kh + j; a = acc(dt, qt)
                S.mf.append(mfma(vr(a, 4), ar(fr(grp, j), 4), vr(P(qt, kk), 4), "0" if kk == 0 else vr(a, 4)))
            chain_end[(grp, qt)] = len(S.mf) - 1
            if g2 == 1: l_mfma(qt, 15)
    gstart[64] = len(S.mf)
    bars = []
    for t in range(1, 16): bars.append((gstart[2 * t - 1], t, t - 1))
    bars.append((gstart[31], 17, 15))
    for u in range(1, 8): bars.append((gstart[32 + 4 * u - 1], 17 + 2 * u, 15 + 2 * u))
    baritems = []; endwait = {}
    for gp, pub, freed in bars:
        w = Wait(); S.fix(w, gp - 1); endwait[gp] = w
        b = It("s_barrier", "scalar"); S.fix(b, gp); S.g(gp)["bar"] = True
        baritems.append((w, b, pub, freed))
    bargaps = {b[0] for b in bars}
    for grp in range(2, 64):
        g0, g1 = gstart[grp - 1], gstart[grp]
        first = g0 + (1 if g0 in bargaps else 0)
        if grp < 32:
            txt = [rd_k(grp, ks) for ks in range(8)]
            if grp == 2: pos = [first + k // 2 for k in range(8)]
            else: pos = [first + (k * cfg.kspan) // 2 for k in range(8)]
            if grp % 8 == 0:
                for r in (0, 1): S.fix(It(f"v_xor_b32_e32 v{vKA+r}, 0x10000, v{vKA+r}", "valu"), g0 - 2 + r)
        else:
            txt = [rd_v(grp, j, kg) for j in range(8) for kg in (0, 1)]
            offs = [[0, 0, 1, 2, 5, 6, 6, 7, 10, 11, 11, 12, 15, 16, 16, 17],
                    [0, 0, 1, 2, 2, 4, 5, 5, 6, 8, 9, 9, 10, 12, 13, 13],
                    [0, 1, 2, 3, 4, 5, 6, 7, 8, 9, 10, 11, 12, 13, 14, 15],
                    [0, 0, 1, 1, 3, 3, 4, 4, 6, 6, 7, 7, 9, 9, 10, 10],
                    [0, 1, 2, 3, 4, 7, 8, 9, 10, 11, 12, 15, 16, 17, 18, 19],
                    [0, 1, 2, 3, 5, 6, 7, 8, 10, 11, 12, 13, 15, 16, 17, 18]][cfg.vpat]
            pos = [g0 + 1 + o for o in offs]
            if grp > 32:
                x = (((grp ^ (grp - 1)) & 3) << 5) | (0x10000 if (grp & 7) == 0 else 0)
                S.fix(It(f"v_xor_b32_e32 v{vVA}, {hex(x)}, v{vVA}", "valu"), g0 - 1)
        its = [S.fix(It(t, "lds", ctr="lgkm"), p) for t, p in zip(txt, pos)]
        if grp == 2:
            S.fix(Wait(its[3]), g1 - 1); S.fix(Wait(its[-1]), g1 + 2)
        elif g1 in endwait: endwait[g1].tg["lgkm"] = its[-1]
        else: S.fix(Wait(its[-1]), g1 - 1)
    prev = None
    n1 = 12 + cfg.lead
    a0, a1 = gstart[2], gstart[32]
    for n in range(4, 32):
        need = max(n - 8, 0)
        gate = next(b for (w, b, pub, freed) in baritems if freed >= need)
        k = n - 4
        tgt = a0 + (a1 - a0) * k // n1 if k < n1 else a1 + (k - n1) * 48
        step = ((a1 - a0) // n1 if k < n1 else 48) // 4
        for t in dma_prep(n):
            prev = S.add(It(t, "scalar", early=tgt - 6, deps=[(prev, 1)] if prev else [], prio=tgt - 6))
        for i in range(4):
            prev = S.add(It(dma_txt(n, i), "full", early=tgt + i * step, deps=[(prev, 1 if (i == 0 or n < 23) else cfg.dstep2), (gate, 1)], prio=max(tgt + i * step, gate.gap), ctr="vm"))
        lastdma[n] = prev
    for (w, b, pub, freed) in baritems:
        w.tg["vm"] = lastdma[pub]
        if pub > 3: lastdma[pub].dead = b.gap - 2
    if cfg.pf:
        for i, g in enumerate(map(int, cfg.pf.split(","))):
            S.add(It(f"buffer_load_dword a{250+i}, v{vIL}, {sr(SF,4)}, 0 offen offset:{256+128*i}{fl(cfg.pf_fl)}", "full", gstart[g] + 3, prio=gstart[g], ctr="vm", dead=gstart[33]))
    for i in range(cfg.pfn):
        g = gstart[cfg.pf0] + (gstart[cfg.pf1] - gstart[cfg.pf0]) * i // cfg.pfn
        x = S.add(It(f"buffer_load_dword a250, v{vPF}, {sr(SF,4)}, 0 offen offset:{256+128*(i//4)}{fl(cfg.pf_fl)}", "full", g, [(pfp, 1)] if i else [], prio=g, ctr="vm"))
        pfp = S.add(It(f"v_add_u32_e32 v{vPF}, {hex(0x10000 if i != 3 else (-0x30000) & 0xffffffff)}, v{vPF}", "valu", g, [(x, 1)], prio=g))
    def soft(grp, qt, extra=()):
        Sb = sbuf(grp, qt); e0 = chain_end[(grp, qt)] + 1; kt, kg = grp >> 1, grp & 1
        reuse = gstart[grp + 4] + 8 * qt - 1 if grp + 4 < 32 else gstart[32 + (grp & 3)] + 8 * qt - 1
        f = [S.add(It(fma1(Sb, i, qt), "valu", e0, extra, prio=e0 + 0.1 * i, mf=e0 - 1)) for i in range(4)]
        x = [S.add(It(exp1(Sb, i), "exp", e0, [(f[i], 0)], prio=e0 + 0.1 * i)) for i in range(4)]
        dead = min(reuse, lpos[(qt, kt)] - 2)
        for h in (0, 1):
            S.add(It(cvt1(P(qt, kt) + 2 * kg + h, Sb + 2 * h), "valu", e0, [(x[2 * h], 1), (x[2 * h + 1], 1)], prio=e0 + 6 + h, dead=dead))
    prev = None
    e0 = chain_end[(1, 2)] + 1
    for t in max_seq(2, sbuf(0, 2), sbuf(1, 2)):
        if t.startswith("s_nop"): continue
        perm = "permlane" in t
        prev = S.add(It(t, "exp" if perm else "valu", e0, [(prev, 2 if perm else 0)] if prev else [], prio=0, mf=e0 - 1))
    soft(0, 2, [(prev, 0)]); soft(1, 2, [(prev, 0)])
    for grp in range(2, 32):
        for qt in range(3): soft(grp, qt)
    e0 = lpos[(2, 15)] + 1
    rds = [S.add(It(f"v_accvgpr_read_b32 v{vIL+qt}, a{aL+4*qt}", "valu", e0, prio=e0, mf=e0 - 1)) for qt in range(3)]
    mx = S.add(It(f"v_max3_f32 v{vT}, v{vIL}, v{vIL+1}, v{vIL+2}", "valu", e0, [(r, 0) for r in rds], prio=e0 + 1))
    rc = [S.add(It(f"v_rcp_f32_e32 v{vIL+qt}, v{vIL+qt}", "exp", e0, [(mx, 0)], prio=e0 + 2)) for qt in range(3)]
    cm = S.add(It(f"v_cmp_nlt_f32_e64 {sr(sFLAG,2)}, v{vT}, s{sLIM}", "valu", e0, [(mx, 0)], prio=e0 + 3))
    c1 = S.add(It(f"v_mov_b32_e32 v{vT}, s{sFLAG}", "valu", e0, [(cm, 2)], prio=e0 + 4))
    c2 = S.add(It(f"v_or_b32_e32 v{vT}, s{sFLAG+1}, v{vT}", "valu", e0, [(c1, 0)], prio=e0 + 5))
    c3 = S.add(It(f"v_mov_b32_e32 v{vT+1}, s{sQL}", "valu", e0, prio=e0 + 5))
    fw = S.add(It(f"ds_write_b32 v{vT+1}, v{vT}", "full", e0, [(c2, 1), (c3, 1)], prio=e0 + 6, ctr="lgkm", dead=gstart[38]))
    def starget(k):
        if not cfg.stime or k >= 18: return 0
        pts = [tuple(map(float, x.split(":"))) for x in cfg.stime.split(",")]
        for (k0, p0), (k1, p1) in zip(pts, pts[1:]):
            if k0 <= k <= k1: return int(gstart[40] + 192 * (p0 + (p1 - p0) * (k - k0) / (k1 - k0) - 1))
    prevw = None; prevst = [None] * 6; prevrb = []; laststore = None
    for ds in range(4):
        for dt in range(4):
            grp = 32 + 8 * ds + 4 + dt
            xo = None
            if ds or dt:
                x = ((dt ^ (dt - 1)) & 3) << 5
                xo = S.add(It(f"v_xor_b32_e32 v{vSW}, {hex(x)}, v{vSW}", "valu", gstart[grp], [(prevw, 1)], prio=gstart[grp]))
            for qt in range(3):
                a = acc(dt, qt); e0 = chain_end[(grp, qt)] + 1
                last = ds == 3 and dt == 3 and qt == 2
                m = [S.add(It(f"v_mul_f32_e32 v{a+i}, v{a+i}, v{vIL+qt}", "valu", e0, [(rc[qt], 1)], prio=e0 + 0.1 * i, mf=e0 - 1)) for i in range(4)]
                c0 = S.add(It(cvt1(a, a), "valu", e0, [(m[0], 0), (m[1], 0)], prio=e0 + 1))
                c1 = S.add(It(cvt1(a + 1, a + 2), "valu", e0, [(m[2], 0), (m[3], 0), (c0, 0)], prio=e0 + 1.1))
                dead = gstart[grp + 4] + 8 * qt - 1 if ds < 3 else None
                prevw = S.add(It(f"ds_write_b64 v{vSW}, {vr(a,2)} offset:{qt*2048}", "full", e0, [(c1, 1)] + ([(xo, 1)] if xo else []) + ([(prevw, 1)] if prevw else []) + [(r, 1) for r in prevrb[:6 * ds]],
                                 prio=e0 - 50, ctr="lgkm", dead=dead))
                if dt == 3:
                    for h in (0, 1):
                        rb = 2 * qt + h
                        r = S.add(It(f"ds_read_b128 {ar(aRB+24*(ds%3)+4*rb,4)}, v{vSR} offset:{rb*1024}", "lds", e0, [(prevw, 1)] + ([(prevst[rb], 2)] if ds == 3 else []), prio=e0, ctr="lgkm"))
                        prevrb.append(r)
                        w = S.add(Wait(r, deps=[(r, 1 if last else 5)], prio=e0))
                        srd, so = (SO, rb) if qt < 2 else (SO2, h)
                        st = S.add(It(f"buffer_store_dwordx4 {ar(aRB+24*(ds%3)+4*rb,4)}, v{vST}, {sr(srd,4)}, {'s%d' % (sSO+so-1) if so else '0'} offen offset:{ds*128}{fl(cfg.o_fl.split(',')[ds % len(cfg.o_fl.split(','))])}",
                                              "full", max(e0, starget(6 * ds + rb)), [(w, 1)] + ([(laststore, cfg.sstep if ds < 3 and not cfg.stime else 1)] if laststore else []), prio=e0 - 20, ctr="vm"))
                        laststore = st
                        if ds == 0: prevst[rb] = st
    S.g(len(S.mf) - 1)["raw"].append("s_nop 7")
    for i, g in ((4, 2), (5, 32), (6, 40), (7, 56)):
        t = stamp_txt(i)
        if t: S.g(gstart[g] - 1)["raw"].append(t)
    S.run(); S.emit()

def prologue():
    stamp(0)
    e(f"""
    s_cmp_ge_u32 s2, 256
    s_cbranch_scc1 L_exit
    s_load_dwordx8 {sr(sPTR,8)}, s[0:1], 0
    v_lshrrev_b32_e32 v1, 6, v0
    s_mov_b32 s{sRUN}, 0
    v_readfirstlane_b32 s{sW}, v1
    """)
    if cfg.stamps: e(f"s_load_dwordx4 {sr(sPTR+8,4)}, s[0:1], 32")
    if cfg.touch:
        e(f"""
        s_getpc_b64 {sr(sPC,2)}
        L_pc:
        v_lshlrev_b32_e32 v2, 7, v0
        v_add_u32_e32 v3, 0x8000, v2
        v_min_u32_e32 v2, L_exit-L_pc, v2
        v_min_u32_e32 v3, L_exit-L_pc, v3
        global_load_dword v4, v2, {sr(sPC,2)}
        global_load_dword v5, v3, {sr(sPC,2)}
        """)
    for qt in range(3): e(f"v_mov_b32_e32 v{vNM+qt}, 0x7f800000")
    L = 8
    e("L_start:")
    e(f"""
    v_mbcnt_lo_u32_b32 v{L}, -1, 0
    v_mbcnt_hi_u32_b32 v{L}, -1, v{L}
    s_lshr_b32 s{sHEAD}, s2, 4
    s_lshl_b32 s{sHEAD}, s{sHEAD}, 3
    s_and_b32 s3, s2, 7
    s_add_u32 s{sHEAD}, s{sHEAD}, s3
    s_bfe_u32 s3, s2, 0x10003
    s_lshl_b32 s3, s3, 2
    s_add_u32 s3, s3, s{sW}
    s_cmp_eq_u32 s3, 7
    s_cselect_b32 s{sSHORT}, 0, -1
    s_mul_i32 s3, s3, 24576
    s_mul_i32 s{sT}, s{sHEAD}, {QHEAD}
    s_add_u32 s{sT}, s{sT}, s3
    s_lshl_b32 s{sT+1}, s{sHEAD}, 18
    s_lshl_b32 s{sW4}, s{sW}, 12
    v_lshrrev_b32_e32 v9, 3, v{L}
    v_and_b32_e32 v10, 7, v{L}
    v_lshrrev_b32_e32 v11, 1, v9
    v_xor_b32_e32 v12, v10, v11
    v_lshlrev_b32_e32 v12, 4, v12
    v_lshl_add_u32 v12, v9, 9, v12
    v_xor_b32_e32 v13, 0x1040, v12
    s_and_b32 s3, s{sW}, 1
    s_lshl_b32 s3, s3, 6
    s_or_b32 s3, s3, s{sW4}
    v_xor_b32_e32 v{vKD}, s3, v12
    s_mul_i32 s{sQL}, s{sW}, 24576
    s_add_u32 s{sQL}, s{sQL}, 0x10000
    """)
    for lc in range(4): e(f"s_mov_b32 s{sKO+lc}, {BIAS - 896*lc}")
    e(f"""
    s_mov_b32 s{SK+2}, {BIAS + 16384}
    s_mov_b32 s{SK+3}, 0x20000
    s_mov_b32 s{SQ+2}, {BIAS + 8192}
    s_mov_b32 s{SQ+3}, 0x20000
    s_mov_b32 m0, s{sW4}
    s_waitcnt lgkmcnt(0)
    """)
    stamp(1)
    e(f"""
    s_add_u32 s{SK}, s{sPTR+2}, s{sT+1}
    s_addc_u32 s{SK+1}, s{sPTR+3}, 0
    s_sub_u32 s{SK}, s{SK}, {BIAS}
    s_subb_u32 s{SK+1}, s{SK+1}, 0
    """)
    vm = []
    def vmem(t): e(t); vm.append(It(t, "full"))
    for i in range(4): vmem(dma_txt(0, i))
    e(f"""
    s_add_u32 s{SQ}, s{sPTR}, s{sT}
    s_addc_u32 s{SQ+1}, s{sPTR+1}, 0
    s_sub_u32 s{SQ}, s{SQ}, {BIAS}
    s_subb_u32 s{SQ+1}, s{SQ+1}, 0
    """)
    rest = f"""
    s_add_u32 s{SV}, s{sPTR+4}, s{sT+1}
    s_addc_u32 s{SV+1}, s{sPTR+5}, 0
    s_mov_b32 s{SV+2}, 65152
    s_mov_b32 s{SV+3}, 0x20000
    s_add_u32 s{SO}, s{sPTR+6}, s{sT}
    s_addc_u32 s{SO+1}, s{sPTR+7}, 0
    s_mov_b32 s{SO+2}, 16384
    s_mov_b32 s{SO+3}, 0x20000
    s_add_u32 s{SO2}, s{SO}, 16384
    s_addc_u32 s{SO2+1}, s{SO+1}, 0
    s_and_b32 s{SO2+2}, s{sSHORT}, 8192
    s_mov_b32 s{SO2+3}, 0x20000
    s_mov_b32 s{SF}, s{SV}
    s_mov_b32 s{SF+1}, s{SV+1}
    s_mov_b32 s{SF+2}, {KHEAD}
    s_mov_b32 s{SF+3}, 0x20000
    s_bfe_u32 s3, s2, 0x10003
    s_lshl_b32 s3, s3, 2
    s_add_u32 s3, s3, s{sW}
    s_lshl_b32 s3, s3, 15
    v_lshl_add_u32 v{vIL}, v{L}, 9, s3
    s_lshr_b32 s3, s3, 2
    v_lshrrev_b32_e32 v14, 2, v{L}
    v_lshl_add_u32 v14, v14, 9, s3
    v_and_b32_e32 v15, 3, v{L}
    v_lshl_add_u32 v{vPF}, v15, 2, v14
    s_mov_b32 s{sVO}, 3072
    s_mov_b32 s{sVO+1}, 6144
    s_mov_b32 s{sVO+2}, 9216
    s_mov_b32 s{sSO}, 4096
    s_mov_b32 s{sSO+1}, 8192
    s_mov_b32 s{sSO+2}, 12288
    s_mov_b32 s{sC}, {f2u(1.4426950408889634 / 16)}
    s_mov_b32 s{sLIM}, {f2u(2.0 ** cfg.lim)}
    v_lshlrev_b32_e32 v14, 1, v11
    v_xor_b32_e32 v14, v14, v10
    v_lshlrev_b32_e32 v14, 4, v14
    v_lshl_add_u32 v14, v9, 9, v14
    s_lshl_b32 s3, s{sW}, 14
    v_add_u32_e32 v{vVD}, s3, v14
    v_lshlrev_b32_e32 v14, 4, v10
    v_lshl_add_u32 v{vST}, v9, 9, v14
    s_mul_i32 s3, s{sW}, 6144
    s_add_u32 s3, s3, {STAGE}
    v_xor_b32_e32 v14, v9, v10
    v_lshlrev_b32_e32 v14, 4, v14
    v_lshl_add_u32 v14, v9, 7, v14
    v_add_u32_e32 v{vSR}, s3, v14
    v_lshrrev_b32_e32 v15, 5, v{L}
    v_xor_b32_e32 v14, v15, v10
    v_lshlrev_b32_e32 v14, 4, v14
    v_and_b32_e32 v16, 15, v{L}
    v_lshl_add_u32 v14, v16, 7, v14
    v_bfe_u32 v17, v{L}, 4, 1
    v_lshl_add_u32 v14, v17, 3, v14
    v_add_u32_e32 v{vSW}, s3, v14
    v_bfe_u32 v14, v{L}, 2, 3
    v_lshlrev_b32_e32 v18, 10, v15
    v_lshl_add_u32 v18, v14, 7, v18
    v_lshrrev_b32_e32 v14, 1, v14
    v_lshl_add_u32 v18, v14, 5, v18
    v_and_b32_e32 v14, 3, v{L}
    v_lshl_add_u32 v{vVA}, v14, 3, v18
    v_bfe_u32 v14, v{L}, 3, 1
    v_lshlrev_b32_e32 v18, 12, v14
    v_lshl_add_u32 v18, v10, 7, v18
    v_bfe_u32 v14, v{L}, 1, 3
    v_lshrrev_b32_e32 v19, 4, v{L}
    v_xor_b32_e32 v14, v14, v19
    v_lshl_add_u32 v{vKA}, v14, 4, v18
    v_xor_b32_e32 v{vKA+1}, 64, v{vKA}
    v_add_u32_e32 v20, s{sQL}, v{vKA}
    v_add_u32_e32 v21, s{sQL}, v{vKA+1}
    v_mov_b32_e32 v14, 0x3f803f80
    v_accvgpr_write_b32 a{aONE}, v14
    v_accvgpr_write_b32 a{aONE+1}, v14
    v_accvgpr_write_b32 a{aONE+2}, v14
    v_accvgpr_write_b32 a{aONE+3}, v14
    """
    for qt in range(3):
        if qt: e(f"s_add_u32 s{SQ}, s{SQ}, 8192\ns_addc_u32 s{SQ+1}, s{SQ+1}, 0")
        if qt == 2: e(f"s_and_b32 s{SQ+2}, s{SQ+2}, s{sSHORT}")
        for par in (0, 1):
            e(f"s_add_u32 m0, s{sQL}, {(2*qt+par)*4096}\ns_nop 0")
            for lc in range(4):
                vmem(f"buffer_load_dwordx4 v{12+par}, {sr(SQ,4)}, s{sKO+lc} offen offset:{1024*lc}{fl(cfg.q_fl)} lds")
        if qt == 0: e(rest)
    stamp(2)
    def wait_vm(k): e(f"s_waitcnt vmcnt({len(vm) - k})")
    def q_reads(qt):
        for ks in range(8): e(f"ds_read_b128 {ar(Qf(qt,ks),4)}, v{20+(ks&1)} offset:{qt*8192 + (ks>>1)*1024}")
    def k_piece(n):
        for t in dma_prep(n): e(t)
        for i in range(4): vmem(dma_txt(n, i))
    sb = lambda grp, qt: ACC + 4 * ((3 * grp + qt) % 12)
    wait_vm(4); e("s_barrier")
    for grp in (0, 1):
        for ks in range(8): e(rd_k(grp, ks))
    k_piece(1)
    for qt in (0, 1):
        wait_vm(12 + 8 * qt); q_reads(qt); k_piece(2 + qt); e("s_waitcnt lgkmcnt(0)")
        for grp in (0, 1):
            for ks in range(8): e(mf_qk(sb(grp, qt), grp, qt, ks))
        e("s_nop 7")
        for t in max_seq(qt, sb(0, qt), sb(1, qt)): e(t)
        for grp in (0, 1):
            for i in range(4): e(fma1(sb(grp, qt), i, qt))
            for i in range(4): e(exp1(sb(grp, qt), i))
        for grp in (0, 1):
            for h in (0, 1): e(cvt1(P(qt, 0) + 2 * grp + h, sb(grp, qt) + 2 * h))
    e(f"s_lshl_b32 s{sQL}, s{sW}, 2\ns_add_u32 s{sQL}, s{sQL}, {FLAGS}")
    wait_vm(28); stamp(3); q_reads(2); e("s_waitcnt lgkmcnt(0)")
    return vm

def finish():
    stamp(8)
    e(f"""
    v_mov_b32_e32 v{vT}, {FLAGS}
    ds_read_b128 v[0:3], v{vT}
    s_waitcnt lgkmcnt(0)
    v_or3_b32 v0, v0, v1, v2
    v_or_b32_e32 v0, v0, v3
    s_nop 0
    v_readfirstlane_b32 s3, v0
    s_cmp_eq_u32 s3, 0
    s_cbranch_scc1 L_done
    s_cmp_lg_u32 s{sRUN}, 0
    s_cbranch_scc1 L_done
    """)
    e(f"""
    s_mov_b32 s{sRUN}, 1
    s_lshl_b32 s3, s{sHEAD}, 18
    s_add_u32 s{SF}, s{sPTR+2}, s3
    s_addc_u32 s{SF+1}, s{sPTR+3}, 0
    s_mov_b32 s{SF+2}, {KHEAD}
    s_mov_b32 s{SF+3}, 0x20000
    v_mbcnt_lo_u32_b32 v8, -1, 0
    v_mbcnt_hi_u32_b32 v8, -1, v8
    v_and_b32_e32 v9, 15, v8
    v_lshrrev_b32_e32 v8, 4, v8
    v_lshlrev_b32_e32 v8, 4, v8
    v_lshl_add_u32 v8, v9, 9, v8
    v_mov_b32_e32 v4, 0xff800000
    v_mov_b32_e32 v5, 0xff800000
    v_mov_b32_e32 v6, 0xff800000
    s_mov_b32 s3, 0
    L_fb:
    """)
    for ks in range(8): e(f"buffer_load_dwordx4 {vr(16+4*ks,4)}, v8, {sr(SF,4)}, 0 offen offset:{64*ks}")
    e("v_add_u32_e32 v8, 0x2000, v8\ns_waitcnt vmcnt(0)")
    for qt in range(3):
        for ks in range(8): e(mfma(vr(48 + 4 * qt, 4), vr(16 + 4 * ks, 4), ar(Qf(qt, ks), 4), "0" if ks == 0 else vr(48 + 4 * qt, 4)))
    e("s_nop 7")
    for qt in range(3):
        b = 48 + 4 * qt
        e(f"v_max3_f32 v{4+qt}, v{4+qt}, v{b}, v{b+1}\nv_max3_f32 v{4+qt}, v{4+qt}, v{b+2}, v{b+3}")
    e("s_add_u32 s3, s3, 1\ns_cmp_lt_u32 s3, 32\ns_cbranch_scc1 L_fb")
    for qt in range(3):
        for t in max_fin(qt, 4 + qt, 7): e(t)
    e("s_barrier\ns_branch L_start")
    e("L_done:")
    if cfg.stamps or cfg.diag >= 0:
        e("s_waitcnt vmcnt(0)"); stamp(9)
    if cfg.stamps:
        e(f"""
        s_mov_b32 s{SD}, s{sPTR+10}
        s_mov_b32 s{SD+1}, s{sPTR+11}
        s_mov_b32 s{SD+2}, 0x100000
        s_mov_b32 s{SD+3}, 0x20000
        s_lshl_b32 s3, s2, 2
        s_add_u32 s3, s3, s{sW}
        s_lshl_b32 s3, s3, 7
        v_mov_b32_e32 v0, s3
        s_getreg_b32 s{sSTT}, hwreg(HW_REG_XCC_ID)
        s_getreg_b32 s{sSTT+1}, hwreg(HW_REG_HW_ID)
        """)
        for i in range(22):
            e(f"v_mov_b32_e32 v1, s{sCY+i}\nbuffer_store_dword v1, v0, {sr(SD,4)}, 0 offen offset:{4*i}\ns_nop 1")
    if cfg.diag >= 0:
        a, b = (cfg.diag % 100) // 10, cfg.diag % 10
        base = sCY if cfg.diag >= 100 else sRT
        e(f"s_sub_u32 s3, s{base+b}, s{base+a}")
        if cfg.diag >= 100: e("s_mul_hi_u32 s3, s3, 0x19999999")
        if cfg.diagmul != 1: e(f"s_mul_i32 s3, s3, {cfg.diagmul}")
        if cfg.diagwg >= 0: e(f"s_cmp_eq_u32 s2, {cfg.diagwg}\ns_cselect_b32 s3, s3, 0")
        e(f"s_min_u32 s3, s3, 20000\ns_add_u32 s3, s3, {cfg.diagbase}\nL_spin:\ns_memrealtime {sr(sSTT,2)}\ns_waitcnt lgkmcnt(0)\ns_sub_u32 s{sT}, s{sSTT}, s{sRT}\ns_cmp_lt_u32 s{sT}, s3\ns_cbranch_scc1 L_spin")
    e("L_exit:\ns_endpgm")

HEAD = open("standalone__mha_softmax__near_ridge.s.ref").read().split("\n")[:9]
def main():
    ap = argparse.ArgumentParser()
    ap.add_argument("-o", default="standalone__mha_softmax__near_ridge.s")
    ap.add_argument("opts", nargs="*")
    a = ap.parse_args()
    for o in a.opts:
        k, v = o.split("=")
        assert hasattr(cfg, k), k
        setattr(cfg, k, v if isinstance(getattr(cfg, k), str) else type(getattr(cfg, k))(eval(v)))
    e(f"{KN}:")
    vm = prologue()
    main_stream(vm)
    finish()
    txt = "\n".join(HEAD) + "\n; @launch grid=(256,1,1) block=(256,1,1) lds=163840\n"
    txt += f'.amdgcn_target "amdgcn-amd-amdhsa--gfx950"\n.text\n.globl {KN}\n.p2align 8\n.type {KN},@function\n'
    txt += "\n".join(l if l.endswith(":") or l.startswith(".") else "    " + l for l in out) + "\n"
    txt += f""".section .rodata,"a"
.p2align 6
.amdhsa_kernel {KN}
  .amdhsa_next_free_vgpr 512
  .amdhsa_next_free_sgpr 102
  .amdhsa_accum_offset 256
  .amdhsa_group_segment_fixed_size 0
  .amdhsa_kernarg_size 48
  .amdhsa_user_sgpr_count 2
  .amdhsa_user_sgpr_kernarg_segment_ptr 1
  .amdhsa_system_sgpr_workgroup_id_x 1
.end_amdhsa_kernel
"""
    open(a.o, "w").write(txt)
main()
```

```python
import sys, struct, argparse

KN = "standalone__mha_softmax__near_ridge_kernel"
BIAS = 4096
QHEAD = 368 * 512
KHEAD = 512 * 512
def f2u(x): return struct.unpack("<I", struct.pack("<f", x))[0]

SQ, SK, SV, SO, SO2 = 4, 8, 12, 16, 20
sKO = 24
sVO = 28
sW, sW4, sC, sRUN, sQL, sHEAD, sSHORT = 31, 32, 33, 34, 35, 36, 37
sT = 38
sSO = 44
sLIM = 47
sFLAG = 48
sWB = 68
sPC = 50
sPTR = 52
SF = 64
sCY, sRT, sSTT, SD = 70, 80, 90, 96
def P(qt, kt): return 64 * qt + 4 * kt
ACC = 192
def acc(dt, qt): return ACC + 12 * dt + 4 * qt
vKA, vKD, vVD, vVA, vSW, vSR, vST = 240, 242, 243, 244, 245, 246, 247
vNM, vIL, vT = 248, 251, 254
vPF = 252
def Qf(qt, ks): return 32 * qt + 4 * ks
RING = 96
def fr(grp, j): return RING + 32 * (grp & 1) + 4 * j
aL, aONE, aRB = 160, 172, 176
STAGE = 131072
FLAGS = 155648

def vr(b, n): return f"v[{b}:{b+n-1}]"
def ar(b, n): return f"a[{b}:{b+n-1}]"
def sr(b, n): return f"s[{b}:{b+n-1}]"

class Cfg:
    stamps = False
    q_fl = 'nt'
    kv_fl = 'nt'
    o_fl = 'sc0_sc1'
    kspan = 5
    vpat = 5
    stime = ''
    pfn = 0
    pf0 = 6
    pf1 = 36
    pf = ''
    pf_fl = ''
    sstep = 28
    lead = 8
    backlog = 18
    dstep2 = 9
    touch = True
    lim = 60
    verbose = False
    pstep = 4
    pstepn = 8
    pre = '0,2'
    ptime = '3:2.2,6:8.2,24:34'
    cheat = 0
    trace = False
    novmwait = 99
    stg = '2,32,40,56'
    dtime = ''
    wb = ''
    wbn = 8
    drop = ''
    diagwg = -1
    diagmul = 1
    diagbase = 5000
    diag = -1
cfg = Cfg()
out = []
tailcode = []
def e(s):
    for l in s.split("\n"):
        l = l.strip()
        if l: out.append(l)
def fl(x): return " " + x.replace("_", " ") if x else ""

TRACE_G = [3, 9, 15, 21, 27, 32, 36, 40, 43, 46, 49, 52, 55, 58, 61, 63]
def stamp_txt(i):
    if cfg.trace:
        k = {0: 0, 3: 1, 8: 18, 9: 19}.get(i)
        return "" if k is None else f"s_memrealtime {sr(sSTT+2,2)}\ns_waitcnt lgkmcnt(0)\ns_mov_b32 s{sCY+k}, s{sSTT+2}"
    if cfg.stamps or (cfg.diag >= 0 and i in (0, (cfg.diag % 100) // 10, cfg.diag % 10)):
        return f"s_memtime {sr(sSTT,2)}\ns_memrealtime {sr(sSTT+2,2)}\ns_waitcnt lgkmcnt(0)\ns_mov_b32 s{sCY+i}, s{sSTT}\ns_mov_b32 s{sRT+i}, s{sSTT+2}"
    return ""
def stamp(i): e(stamp_txt(i))

def mfma(d, a, b, c): return f"v_mfma_f32_16x16x32_bf16 {d}, {a}, {b}, {c}"
def mf_qk(S, grp, qt, ks): return mfma(vr(S, 4), ar(fr(grp, ks), 4), ar(Qf(qt, ks), 4), "0" if ks == 0 else vr(S, 4))
def rd_k(grp, ks):
    t, kg = grp >> 1, grp & 1
    return f"ds_read_b128 {ar(fr(grp,ks),4)}, v{vKA+(ks&1)} offset:{(t&3)*16384 + kg*8192 + (ks>>1)*1024}"
def rd_v(grp, j, kg):
    kh = (grp >> 2) & 1; kk = 8 * kh + j
    return f"ds_read_b64_tr_b16 {ar(fr(grp,j)+2*kg,2)}, v{vVA} offset:{(kk>>2)*16384 + (4*(kk&3)+2*kg)*1024}"
def dma_txt(n, i):
    if n < 16: return f"buffer_load_dwordx4 v{vKD}, {sr(SK,4)}, s{sKO+i} offen offset:{1024*i}{fl(cfg.kv_fl)} lds"
    return f"buffer_load_dwordx4 v{vVD}, {sr(SV,4)}, {'s%d' % (sVO+i-1) if i else '0'} offen offset:{1024*i}{fl(cfg.kv_fl)} lds"
def dma_prep(n):
    off = (n & 7) * 16384
    r = [f"s_add_u32 m0, s{sW4}, {off}" if off else f"s_mov_b32 m0, s{sW4}"]
    if 0 < n < 16: r += [f"s_add_u32 s{SK}, s{SK}, 0x4000", f"s_addc_u32 s{SK+1}, s{SK+1}, 0"]
    elif n > 16:
        if (n & 3): r += [f"s_add_u32 s{SV}, s{SV}, 0x10000", f"s_addc_u32 s{SV+1}, s{SV+1}, 0"]
        else: r += [f"s_sub_u32 s{SV}, s{SV}, {3*65536-128}", f"s_subb_u32 s{SV+1}, s{SV+1}, 0"]
    return r
def max_seq(qt, Sa, Sb):
    t, u = vT, vT + 1
    return [f"v_max3_f32 v{t}, v{Sa}, v{Sa+1}, v{Sa+2}", f"v_max3_f32 v{t}, v{t}, v{Sa+3}, v{Sb}",
            f"v_max3_f32 v{t}, v{t}, v{Sb+1}, v{Sb+2}", f"v_max_f32_e32 v{t}, v{t}, v{Sb+3}"] + max_fin(qt, t, u)
def max_fin(qt, t, u):
    return [f"v_mov_b32_e32 v{u}, v{t}", "s_nop 1", f"v_permlane32_swap_b32_e32 v{t}, v{u}", f"v_max_f32_e32 v{t}, v{t}, v{u}",
            f"v_mov_b32_e32 v{u}, v{t}", "s_nop 1", f"v_permlane16_swap_b32_e32 v{t}, v{u}", f"v_max_f32_e32 v{t}, v{t}, v{u}",
            f"v_mul_f32_e64 v{t}, v{t}, -s{sC}", f"v_min_f32_e32 v{vNM+qt}, v{vNM+qt}, v{t}"]
def fma1(S, i, qt): return f"v_fma_f32 v{S+i}, v{S+i}, s{sC}, v{vNM+qt}"
def exp1(S, i): return f"v_exp_f32_e32 v{S+i}, v{S+i}"
def cvt1(d, a): return f"v_cvt_pk_bf16_f32 v{d}, v{a}, v{a+1}"

class It:
    def __init__(s, text, kind, early=0, deps=(), prio=0, dead=None, ctr=None, mf=None):
        s.text, s.kind, s.early, s.deps, s.prio, s.dead, s.ctr = text, kind, early, list(deps), prio, dead, ctr
        s.gap = None; s.mf = mf
        s.cost = {"valu": 1, "exp": 2, "lds": 1, "full": 2, "scalar": 0}[kind]
class Wait(It):
    def __init__(s, lgkm=None, vm=None, **kw):
        It.__init__(s, None, "scalar", **kw); s.tg = {"vm": vm, "lgkm": lgkm}

class Stream:
    def __init__(s):
        s.mf = []; s.items = []; s.gaps = {}
        s.issued = {"lgkm": [], "vm": []}
    def g(s, i): return s.gaps.setdefault(i, dict(sh=[], mem=[], valu=[], bar=False, raw=[]))
    def add(s, it): s.items.append(it); return it
    def fix(s, it, gap):
        it.gap = gap
        s.g(gap)["sh" if it.kind == "scalar" else "mem" if it.kind in ("lds", "full") else "valu"].append(it)
        return it
    def used(s, i):
        G = s.g(i); return sum(x.cost for x in G["mem"] + G["valu"]) + max(0, len(G["sh"]) - 1)
    def run(s, ngaps_extra=400):
        pend = sorted(s.items, key=lambda x: x.prio)
        n = len(s.mf)
        def dist(m, i):
            c = min(i, n - 1) - m
            for k in range(m, i + 1):
                G = s.g(k); c += len(G["sh"]) + len(G["mem"]) + len(G["valu"]) + (8 if G["raw"] and k < i else 0)
            return c
        def ok(x, i):
            return x.early <= i and all(d.gap is not None and d.gap + m <= i for d, m in x.deps) and (x.mf is None or (i > x.mf and dist(x.mf, i) >= 8))
        i = 0
        while pend:
            tailmode = i >= n - 1
            G = s.g(i)
            def take(x): pend.remove(x); s.fix(x, i); assert x.dead is None or i <= x.dead, (x.text, i, x.dead)
            if True:
                placed_full = False
                if s.used(i) == 0 and not G["bar"]:
                    for x in pend:
                        if x.kind == "full" and ok(x, i) and (not G["sh"] or x.text.startswith("ds_")):
                            take(x); placed_full = True; break
                if not G["sh"] and not (placed_full and not G["mem"][0].text.startswith("ds_")):
                    for x in pend:
                        if x.kind == "scalar" and ok(x, i): take(x); break
                if not placed_full:
                    prevx = any(y.text.startswith("ds_write") for y in s.g(i - 1)["mem"])
                    for x in list(pend):
                        if x.kind == "lds" and ok(x, i) and s.used(i) < 2 and not prevx and not G["bar"]: take(x)
                    while True:
                        back = sum(x.cost for x in pend if x.kind in ("valu", "exp") and x.early <= i)
                        budget = 1 if G["bar"] else 3 if back > cfg.backlog else 2
                        free = budget - s.used(i)
                        el = [x for x in pend if x.kind in ("valu", "exp") and ok(x, i) and x.cost <= free]
                        if not el: break
                        ex = [x for x in el if x.kind == "exp"]
                        take(ex[0] if ex else el[0])
            i += 1
            assert i < n + ngaps_extra, [x.text for x in pend][:5]
        s.last = max(s.gaps)
    def emit1(s, x):
        if isinstance(x, Wait):
            w = []
            for c, t in x.tg.items():
                if t is None: continue
                q = s.issued[c]
                w.append(f"{c}cnt({min(len(q) - 1 - q.index(t), (0 if getattr(x, 'zero', 0) else 15) if c == 'lgkm' else 63)})")
            e("s_waitcnt " + " ".join(w))
        else:
            e("s_nop 0" if cfg.drop and x.text.startswith(tuple(cfg.drop.split(","))) else x.text)
            if x.ctr: s.issued[x.ctr].append(x)
    def emit(s):
        over = 0; line = []
        for i in range(s.last + 1):
            if i < len(s.mf): e(s.mf[i])
            G = s.g(i)
            for x in G["sh"] + G["mem"] + G["valu"]: s.emit1(x)
            for t in G["raw"]: e(t)
            if "post" in G: e(G["post"])
            u = s.used(i); over += max(0, u - 2) if i < len(s.mf) else 0
            line.append(("B" if G["bar"] else "." if G["sh"] else "") + "".join({"lds": "r", "full": x.text[:8] == "ds_write" and "x" or x.text[:8] == "buffer_l" and "D" or x.text[:3] == "s_b" and "B" or "S", "valu": "a", "exp": "E"}[x.kind] for x in G["mem"] + G["valu"]))
        if cfg.verbose:
            for k in range(0, len(line), 25): print(k, "|".join(line[k:k + 25]), file=sys.stderr)
        print(f"mfma {len(s.mf)} gaps {s.last+1} overflow slots {over}", file=sys.stderr)

def main_stream(pre_vm):
    S = Stream()
    S.issued["vm"] = list(pre_vm)
    npre = len(cfg.pre.split(','))
    lastdma = {n: pre_vm[27 + 4 * n] for n in range(1, npre + 1)}
    gstart = {}
    chain_end = {}
    pdone = {}
    lpos = {}
    def l_mfma(qt, kt):
        lpos[(qt, kt)] = len(S.mf)
        S.mf.append(mfma(ar(aL + 4 * qt, 4), ar(aONE, 4), vr(P(qt, kt), 4), "0" if kt == 0 else ar(aL + 4 * qt, 4)))
    sbuf = lambda grp, qt: ACC + 4 * ((3 * grp + qt) % 12)
    for grp in (0, 1):
        gstart[grp] = len(S.mf)
        for ks in range(8): S.mf.append(mf_qk(sbuf(grp, 2), grp, 2, ks))
        chain_end[(grp, 2)] = len(S.mf) - 1
    for grp in range(2, 32):
        gstart[grp] = len(S.mf)
        for qt in range(3):
            for ks in range(8): S.mf.append(mf_qk(sbuf(grp, qt), grp, qt, ks))
            chain_end[(grp, qt)] = len(S.mf) - 1
            if grp & 1: l_mfma(qt, (grp >> 1) - 1)
    for g2 in range(32):
        grp = 32 + g2; ds, kh, dt = g2 >> 3, (g2 >> 2) & 1, g2 & 3
        gstart[grp] = len(S.mf)
        for qt in range(3):
            for j in range(8):
                kk = 8 * kh + j; a = acc(dt, qt)
                S.mf.append(mfma(vr(a, 4), ar(fr(grp, j), 4), vr(P(qt, kk), 4), "0" if kk == 0 else vr(a, 4)))
            chain_end[(grp, qt)] = len(S.mf) - 1
            if g2 == 1: l_mfma(qt, 15)
    gstart[64] = len(S.mf)
    bars = []
    for t in range(1, 16): bars.append((gstart[2 * t - 1], t, t - 1))
    bars.append((gstart[31], 17, 15))
    for u in range(1, 8): bars.append((gstart[32 + 4 * u - 1], 17 + 2 * u, 15 + 2 * u))
    baritems = []; endwait = {}
    for gp, pub, freed in bars:
        w = Wait(); S.fix(w, gp - 1); endwait[gp] = w
        b = It("s_barrier", "scalar"); S.fix(b, gp); S.g(gp)["bar"] = True
        baritems.append((w, b, pub, freed))
    bargaps = {b[0] for b in bars}
    for grp in range(2, 64):
        g0, g1 = gstart[grp - 1], gstart[grp]
        first = g0 + (1 if g0 in bargaps else 0)
        if grp < 32:
            txt = [rd_k(grp, ks) for ks in range(8)]
            if grp == 2: pos = [first + k // 2 for k in range(8)]
            else: pos = [first + (k * cfg.kspan) // 2 for k in range(8)]
            if grp % 8 == 0:
                for r in (0, 1): S.fix(It(f"v_xor_b32_e32 v{vKA+r}, 0x10000, v{vKA+r}", "valu"), g0 - 2 + r)
        else:
            txt = [rd_v(grp, j, kg) for j in range(8) for kg in (0, 1)]
            offs = [[0, 0, 1, 2, 5, 6, 6, 7, 10, 11, 11, 12, 15, 16, 16, 17],
                    [0, 0, 1, 2, 2, 4, 5, 5, 6, 8, 9, 9, 10, 12, 13, 13],
                    [0, 1, 2, 3, 4, 5, 6, 7, 8, 9, 10, 11, 12, 13, 14, 15],
                    [0, 0, 1, 1, 3, 3, 4, 4, 6, 6, 7, 7, 9, 9, 10, 10],
                    [0, 1, 2, 3, 4, 7, 8, 9, 10, 11, 12, 15, 16, 17, 18, 19],
                    [0, 1, 2, 3, 5, 6, 7, 8, 10, 11, 12, 13, 15, 16, 17, 18]][cfg.vpat]
            pos = [g0 + 1 + o for o in offs]
            if grp > 32:
                x = (((grp ^ (grp - 1)) & 3) << 5) | (0x10000 if (grp & 7) == 0 else 0)
                S.fix(It(f"v_xor_b32_e32 v{vVA}, {hex(x)}, v{vVA}", "valu"), g0 - 1)
        its = [S.fix(It(t, "lds", ctr="lgkm"), p) for t, p in zip(txt, pos)]
        if grp == 2:
            S.fix(Wait(its[3]), g1 - 1); S.fix(Wait(its[-1]), g1 + 2)
        elif g1 in endwait: endwait[g1].tg["lgkm"] = its[-1]
        else: endwait[g1] = S.fix(Wait(its[-1]), g1 - 1)
        if cfg.trace and grp in TRACE_G:
            S.fix(It(f"s_memrealtime {sr(sSTT+2,2)}", "scalar"), g1 - 5); endwait[g1].zero = True
            S.fix(It(f"s_mov_b32 s{sCY+2+TRACE_G.index(grp)}, s{sSTT+2}", "scalar"), g1 + 1)
    def piecewise(spec, k):
        pts = [tuple(map(float, x.split(":"))) for x in spec.split(",")]
        for (k0, p0), (k1, p1) in zip(pts, pts[1:]):
            if k0 <= k <= k1: return int(gstart[40] + 192 * (p0 + (p1 - p0) * (k - k0) / (k1 - k0) - 1))
    prev = None
    n1 = 12 + cfg.lead
    a0, a1 = gstart[2], gstart[32]
    for n in range(npre + 1, 32):
        need = max(n - 8 - (cfg.cheat if n >= 24 else 0), 0)
        gate = next(b for (w, b, pub, freed) in baritems if freed >= need)
        if n < 4: gate = It('', 'scalar'); gate.gap = -1
        k = n - 4
        tgt = a0 + (a1 - a0) * k // n1 if k < n1 else a1 + (k - n1) * 48
        step = ((a1 - a0) // n1 if k < n1 else 48) // 4
        if cfg.ptime and n < 24:
            def pw(k):
                pts = [tuple(map(float, x.split(":"))) for x in cfg.ptime.split(",")]
                for (k0, p0), (k1, p1) in zip(pts, pts[1:]):
                    if k0 <= k <= k1: return a0 + (p0 + (p1 - p0) * (k - k0) / (k1 - k0) - 2) * 25.5
            tgt = int(pw(n)); step = int((pw(n + 1) - pw(n)) / 4)
            if n < cfg.pstepn: step = min(step, cfg.pstep)
        pd = prev
        for t in dma_prep(n):
            prev = S.add(It(t, "scalar", early=tgt - 6, deps=[(prev, 1)] if prev else [], prio=tgt - 6))
        for i in range(4):
            if cfg.dtime and n >= 24:
                tt = piecewise(cfg.dtime, 4 * (n - 24) + i)
                prev = S.add(It(dma_txt(n, i), "full", early=tt, deps=[(prev, 1), (gate, 1)], prio=tt - 30, ctr="vm"))
                continue
            prev = S.add(It(dma_txt(n, i), "full", early=tgt + i * step, deps=[(prev, 1 if (i == 0 or n < 23) else cfg.dstep2), (gate, 1)] + ([(pd, cfg.dstep2)] if n > 23 else []), prio=max(tgt + i * step, gate.gap), ctr="vm"))
        lastdma[n] = prev
    for (w, b, pub, freed) in baritems:
        if pub < cfg.novmwait: w.tg["vm"] = lastdma[pub]
        if pub > npre: lastdma[pub].dead = b.gap - 2
    if cfg.pf:
        for i, g in enumerate(map(int, cfg.pf.split(","))):
            S.add(It(f"buffer_load_dword a{250+i}, v{vIL}, {sr(SF,4)}, 0 offen offset:{256+128*i}{fl(cfg.pf_fl)}", "full", gstart[g] + 3, prio=gstart[g], ctr="vm", dead=gstart[33]))
    for i in range(cfg.pfn):
        g = gstart[cfg.pf0] + (gstart[cfg.pf1] - gstart[cfg.pf0]) * i // cfg.pfn
        x = S.add(It(f"buffer_load_dword a250, v{vPF}, {sr(SF,4)}, 0 offen offset:{256+128*(i//4)}{fl(cfg.pf_fl)}", "full", g, [(pfp, 1)] if i else [], prio=g, ctr="vm"))
        pfp = S.add(It(f"v_add_u32_e32 v{vPF}, {hex(0x10000 if i != 3 else (-0x30000) & 0xffffffff)}, v{vPF}", "valu", g, [(x, 1)], prio=g))
    def soft(grp, qt, extra=()):
        Sb = sbuf(grp, qt); e0 = chain_end[(grp, qt)] + 1; kt, kg = grp >> 1, grp & 1
        reuse = gstart[grp + 4] + 8 * qt - 1 if grp + 4 < 32 else gstart[32 + (grp & 3)] + 8 * qt - 1
        f = [S.add(It(fma1(Sb, i, qt), "valu", e0, extra, prio=e0 + 0.1 * i, mf=e0 - 1)) for i in range(4)]
        x = [S.add(It(exp1(Sb, i), "exp", e0, [(f[i], 0)], prio=e0 + 0.1 * i)) for i in range(4)]
        dead = min(reuse, lpos[(qt, kt)] - 2)
        for h in (0, 1):
            S.add(It(cvt1(P(qt, kt) + 2 * kg + h, Sb + 2 * h), "valu", e0, [(x[2 * h], 1), (x[2 * h + 1], 1)], prio=e0 + 6 + h, dead=dead))
    prev = None
    e0 = chain_end[(1, 2)] + 1
    for t in max_seq(2, sbuf(0, 2), sbuf(1, 2)):
        if t.startswith("s_nop"): continue
        perm = "permlane" in t
        prev = S.add(It(t, "exp" if perm else "valu", e0, [(prev, 2 if perm else 0)] if prev else [], prio=0, mf=e0 - 1))
    soft(0, 2, [(prev, 0)]); soft(1, 2, [(prev, 0)])
    for grp in range(2, 32):
        for qt in range(3): soft(grp, qt)
    e0 = lpos[(2, 15)] + 1
    rds = [S.add(It(f"v_accvgpr_read_b32 v{vIL+qt}, a{aL+4*qt}", "valu", e0, prio=e0, mf=e0 - 1)) for qt in range(3)]
    mx = S.add(It(f"v_max3_f32 v{vT}, v{vIL}, v{vIL+1}, v{vIL+2}", "valu", e0, [(r, 0) for r in rds], prio=e0 + 1))
    rc = [S.add(It(f"v_rcp_f32_e32 v{vIL+qt}, v{vIL+qt}", "exp", e0, [(mx, 0)], prio=e0 + 2)) for qt in range(3)]
    cm = S.add(It(f"v_cmp_nlt_f32_e64 {sr(sFLAG,2)}, v{vT}, s{sLIM}", "valu", e0, [(mx, 0)], prio=e0 + 3))
    c1 = S.add(It(f"v_mov_b32_e32 v{vT}, s{sFLAG}", "valu", e0, [(cm, 2)], prio=e0 + 4))
    c2 = S.add(It(f"v_or_b32_e32 v{vT}, s{sFLAG+1}, v{vT}", "valu", e0, [(c1, 0)], prio=e0 + 5))
    c3 = S.add(It(f"v_mov_b32_e32 v{vT+1}, s{sQL}", "valu", e0, prio=e0 + 5))
    fw = S.add(It(f"ds_write_b32 v{vT+1}, v{vT}", "full", e0, [(c2, 1), (c3, 1)], prio=e0 + 6, ctr="lgkm", dead=gstart[38]))
    def starget(k):
        if not cfg.stime or k >= 18: return 0
        pts = [tuple(map(float, x.split(":"))) for x in cfg.stime.split(",")]
        for (k0, p0), (k1, p1) in zip(pts, pts[1:]):
            if k0 <= k <= k1: return int(gstart[40] + 192 * (p0 + (p1 - p0) * (k - k0) / (k1 - k0) - 1))
    prevw = None; prevst = [None] * 6; prevrb = []; laststore = None
    for ds in range(4):
        for dt in range(4):
            grp = 32 + 8 * ds + 4 + dt
            xo = None
            if ds or dt:
                x = ((dt ^ (dt - 1)) & 3) << 5
                xo = S.add(It(f"v_xor_b32_e32 v{vSW}, {hex(x)}, v{vSW}", "valu", gstart[grp], [(prevw, 1)], prio=gstart[grp]))
            for qt in range(3):
                a = acc(dt, qt); e0 = chain_end[(grp, qt)] + 1
                last = ds == 3 and dt == 3 and qt == 2
                m = [S.add(It(f"v_mul_f32_e32 v{a+i}, v{a+i}, v{vIL+qt}", "valu", e0, [(rc[qt], 1)], prio=e0 + 0.1 * i, mf=e0 - 1)) for i in range(4)]
                c0 = S.add(It(cvt1(a, a), "valu", e0, [(m[0], 0), (m[1], 0)], prio=e0 + 1))
                c1 = S.add(It(cvt1(a + 1, a + 2), "valu", e0, [(m[2], 0), (m[3], 0), (c0, 0)], prio=e0 + 1.1))
                dead = gstart[grp + 4] + 8 * qt - 1 if ds < 3 else None
                prevw = S.add(It(f"ds_write_b64 v{vSW}, {vr(a,2)} offset:{qt*2048}", "full", e0, [(c1, 1)] + ([(xo, 1)] if xo else []) + ([(prevw, 1)] if prevw else []) + [(r, 1) for r in prevrb[:6 * ds]],
                                 prio=e0 - 50, ctr="lgkm", dead=dead))
                if dt == 3:
                    for h in (0, 1):
                        rb = 2 * qt + h
                        r = S.add(It(f"ds_read_b128 {ar(aRB+24*(ds%3)+4*rb,4)}, v{vSR} offset:{rb*1024}", "lds", e0, [(prevw, 1)] + ([(prevst[rb], 2)] if ds == 3 else []), prio=e0, ctr="lgkm"))
                        prevrb.append(r)
                        w = S.add(Wait(r, deps=[(r, 1 if last else 5)], prio=e0))
                        srd, so = (SO, rb) if qt < 2 else (SO2, h)
                        st = S.add(It(f"buffer_store_dwordx4 {ar(aRB+24*(ds%3)+4*rb,4)}, v{vST}, {sr(srd,4)}, {'s%d' % (sSO+so-1) if so else '0'} offen offset:{ds*128}{fl(cfg.o_fl.split(',')[ds % len(cfg.o_fl.split(','))])}",
                                              "full", max(e0, starget(6 * ds + rb)), [(w, 1)] + ([(laststore, cfg.sstep if ds < 3 and not cfg.stime else 1)] if laststore else []), prio=e0 - 20, ctr="vm"))
                        laststore = st
                        if ds == 0: prevst[rb] = st
    S.g(len(S.mf) - 1)["raw"].append("s_nop 7")
    if cfg.wb:
        for k, p in enumerate(map(float, cfg.wb.split(","))):
            g = int(gstart[40] + 192 * (p - 1))
            S.g(g)["post"] = f"s_cmp_eq_u32 s{sWB}, {k}\ns_cbranch_scc1 L_wb{k}\nL_wbr{k}:"
            tailcode.append(f"L_wb{k}:\nbuffer_wbl2 sc1\ns_branch L_wbr{k}")
    for i, g in zip((4, 5, 6, 7), map(int, cfg.stg.split(','))):
        t = stamp_txt(i)
        if t: S.g(gstart[g] - 1)["raw"].append(t)
    S.run(); S.emit()

def prologue():
    stamp(0)
    e(f"""
    s_cmp_ge_u32 s2, 256
    s_cbranch_scc1 L_exit
    s_load_dwordx8 {sr(sPTR,8)}, s[0:1], 0
    v_lshrrev_b32_e32 v1, 6, v0
    s_mov_b32 s{sRUN}, 0
    v_readfirstlane_b32 s{sW}, v1
    """)
    if cfg.stamps: e(f"s_load_dwordx4 {sr(sPTR+8,4)}, s[0:1], 32")
    if cfg.touch:
        e(f"""
        s_getpc_b64 {sr(sPC,2)}
        L_pc:
        v_lshlrev_b32_e32 v2, 7, v0
        v_add_u32_e32 v3, 0x8000, v2
        v_min_u32_e32 v2, L_exit-L_pc, v2
        v_min_u32_e32 v3, L_exit-L_pc, v3
        global_load_dword v4, v2, {sr(sPC,2)}
        global_load_dword v5, v3, {sr(sPC,2)}
        """)
    for qt in range(3): e(f"v_mov_b32_e32 v{vNM+qt}, 0x7f800000")
    L = 8
    e("L_start:")
    e(f"""
    v_mbcnt_lo_u32_b32 v{L}, -1, 0
    v_mbcnt_hi_u32_b32 v{L}, -1, v{L}
    s_lshr_b32 s{sHEAD}, s2, 4
    s_lshl_b32 s{sHEAD}, s{sHEAD}, 3
    s_and_b32 s3, s2, 7
    s_add_u32 s{sHEAD}, s{sHEAD}, s3
    s_bfe_u32 s3, s2, 0x10003
    s_lshl_b32 s3, s3, 2
    s_add_u32 s3, s3, s{sW}
    s_cmp_eq_u32 s3, 7
    s_cselect_b32 s{sSHORT}, 0, -1
    s_mul_i32 s3, s3, 24576
    s_mul_i32 s{sT}, s{sHEAD}, {QHEAD}
    s_add_u32 s{sT}, s{sT}, s3
    s_lshl_b32 s{sT+1}, s{sHEAD}, 18
    s_lshl_b32 s{sW4}, s{sW}, 12
    v_lshrrev_b32_e32 v9, 3, v{L}
    v_and_b32_e32 v10, 7, v{L}
    v_lshrrev_b32_e32 v11, 1, v9
    v_xor_b32_e32 v12, v10, v11
    v_lshlrev_b32_e32 v12, 4, v12
    v_lshl_add_u32 v12, v9, 9, v12
    v_xor_b32_e32 v13, 0x1040, v12
    s_and_b32 s3, s{sW}, 1
    s_lshl_b32 s3, s3, 6
    s_or_b32 s3, s3, s{sW4}
    v_xor_b32_e32 v{vKD}, s3, v12
    s_mul_i32 s{sQL}, s{sW}, 24576
    s_add_u32 s{sQL}, s{sQL}, 0x10000
    """)
    for lc in range(4): e(f"s_mov_b32 s{sKO+lc}, {BIAS - 896*lc}")
    e(f"""
    s_mov_b32 s{SK+2}, {BIAS + 16384}
    s_mov_b32 s{SK+3}, 0x20000
    s_mov_b32 s{SQ+2}, {BIAS + 8192}
    s_mov_b32 s{SQ+3}, 0x20000
    s_mov_b32 m0, s{sW4}
    s_waitcnt lgkmcnt(0)
    """)
    stamp(1)
    e(f"""
    s_add_u32 s{SK}, s{sPTR+2}, s{sT+1}
    s_addc_u32 s{SK+1}, s{sPTR+3}, 0
    s_sub_u32 s{SK}, s{SK}, {BIAS}
    s_subb_u32 s{SK+1}, s{SK+1}, 0
    """)
    vm = []
    def vmem(t): e(t); vm.append(It(t, "full"))
    for i in range(4): vmem(dma_txt(0, i))
    e(f"""
    s_add_u32 s{SQ}, s{sPTR}, s{sT}
    s_addc_u32 s{SQ+1}, s{sPTR+1}, 0
    s_sub_u32 s{SQ}, s{SQ}, {BIAS}
    s_subb_u32 s{SQ+1}, s{SQ+1}, 0
    """)
    rest = f"""
    s_add_u32 s{SV}, s{sPTR+4}, s{sT+1}
    s_addc_u32 s{SV+1}, s{sPTR+5}, 0
    s_mov_b32 s{SV+2}, 65152
    s_mov_b32 s{SV+3}, 0x20000
    s_add_u32 s{SO}, s{sPTR+6}, s{sT}
    s_addc_u32 s{SO+1}, s{sPTR+7}, 0
    s_mov_b32 s{SO+2}, 16384
    s_mov_b32 s{SO+3}, 0x20000
    s_add_u32 s{SO2}, s{SO}, 16384
    s_addc_u32 s{SO2+1}, s{SO+1}, 0
    s_and_b32 s{SO2+2}, s{sSHORT}, 8192
    s_mov_b32 s{SO2+3}, 0x20000
    s_mov_b32 s{SF}, s{SV}
    s_mov_b32 s{SF+1}, s{SV+1}
    s_mov_b32 s{SF+2}, {KHEAD}
    s_mov_b32 s{SF+3}, 0x20000
    s_bfe_u32 s3, s2, 0x10003
    s_lshl_b32 s3, s3, 2
    s_add_u32 s3, s3, s{sW}
    s_lshl_b32 s3, s3, 15
    v_lshl_add_u32 v{vIL}, v{L}, 9, s3
    s_lshr_b32 s3, s3, 2
    v_lshrrev_b32_e32 v14, 2, v{L}
    v_lshl_add_u32 v14, v14, 9, s3
    v_and_b32_e32 v15, 3, v{L}
    v_lshl_add_u32 v{vPF}, v15, 2, v14
    s_lshr_b32 s{sWB}, s2, 3
    s_cmp_eq_u32 s{sW}, 0
    s_cselect_b32 s{sWB}, s{sWB}, -1
    s_mov_b32 s{sVO}, 3072
    s_mov_b32 s{sVO+1}, 6144
    s_mov_b32 s{sVO+2}, 9216
    s_mov_b32 s{sSO}, 4096
    s_mov_b32 s{sSO+1}, 8192
    s_mov_b32 s{sSO+2}, 12288
    s_mov_b32 s{sC}, {f2u(1.4426950408889634 / 16)}
    s_mov_b32 s{sLIM}, {f2u(2.0 ** cfg.lim)}
    v_lshlrev_b32_e32 v14, 1, v11
    v_xor_b32_e32 v14, v14, v10
    v_lshlrev_b32_e32 v14, 4, v14
    v_lshl_add_u32 v14, v9, 9, v14
    s_lshl_b32 s3, s{sW}, 14
    v_add_u32_e32 v{vVD}, s3, v14
    v_lshlrev_b32_e32 v14, 4, v10
    v_lshl_add_u32 v{vST}, v9, 9, v14
    s_mul_i32 s3, s{sW}, 6144
    s_add_u32 s3, s3, {STAGE}
    v_xor_b32_e32 v14, v9, v10
    v_lshlrev_b32_e32 v14, 4, v14
    v_lshl_add_u32 v14, v9, 7, v14
    v_add_u32_e32 v{vSR}, s3, v14
    v_lshrrev_b32_e32 v15, 5, v{L}
    v_xor_b32_e32 v14, v15, v10
    v_lshlrev_b32_e32 v14, 4, v14
    v_and_b32_e32 v16, 15, v{L}
    v_lshl_add_u32 v14, v16, 7, v14
    v_bfe_u32 v17, v{L}, 4, 1
    v_lshl_add_u32 v14, v17, 3, v14
    v_add_u32_e32 v{vSW}, s3, v14
    v_bfe_u32 v14, v{L}, 2, 3
    v_lshlrev_b32_e32 v18, 10, v15
    v_lshl_add_u32 v18, v14, 7, v18
    v_lshrrev_b32_e32 v14, 1, v14
    v_lshl_add_u32 v18, v14, 5, v18
    v_and_b32_e32 v14, 3, v{L}
    v_lshl_add_u32 v{vVA}, v14, 3, v18
    v_bfe_u32 v14, v{L}, 3, 1
    v_lshlrev_b32_e32 v18, 12, v14
    v_lshl_add_u32 v18, v10, 7, v18
    v_bfe_u32 v14, v{L}, 1, 3
    v_lshrrev_b32_e32 v19, 4, v{L}
    v_xor_b32_e32 v14, v14, v19
    v_lshl_add_u32 v{vKA}, v14, 4, v18
    v_xor_b32_e32 v{vKA+1}, 64, v{vKA}
    v_add_u32_e32 v20, s{sQL}, v{vKA}
    v_add_u32_e32 v21, s{sQL}, v{vKA+1}
    v_mov_b32_e32 v14, 0x3f803f80
    v_accvgpr_write_b32 a{aONE}, v14
    v_accvgpr_write_b32 a{aONE+1}, v14
    v_accvgpr_write_b32 a{aONE+2}, v14
    v_accvgpr_write_b32 a{aONE+3}, v14
    """
    for qt in range(3):
        if qt: e(f"s_add_u32 s{SQ}, s{SQ}, 8192\ns_addc_u32 s{SQ+1}, s{SQ+1}, 0")
        if qt == 2: e(f"s_and_b32 s{SQ+2}, s{SQ+2}, s{sSHORT}")
        for par in (0, 1):
            e(f"s_add_u32 m0, s{sQL}, {(2*qt+par)*4096}\ns_nop 0")
            for lc in range(4):
                vmem(f"buffer_load_dwordx4 v{12+par}, {sr(SQ,4)}, s{sKO+lc} offen offset:{1024*lc}{fl(cfg.q_fl)} lds")
        if qt == 0: e(rest)
    stamp(2)
    def wait_vm(k): e(f"s_waitcnt vmcnt({len(vm) - k})")
    def q_reads(qt):
        for ks in range(8): e(f"ds_read_b128 {ar(Qf(qt,ks),4)}, v{20+(ks&1)} offset:{qt*8192 + (ks>>1)*1024}")
    def k_piece(n):
        for t in dma_prep(n): e(t)
        for i in range(4): vmem(dma_txt(n, i))
    sb = lambda grp, qt: ACC + 4 * ((3 * grp + qt) % 12)
    wait_vm(4); e("s_barrier")
    for grp in (0, 1):
        for ks in range(8): e(rd_k(grp, ks))
    def pre_k(when):
        for n, w in enumerate(map(int, cfg.pre.split(',')), 1):
            if w == when: k_piece(n)
    pre_k(0)
    for qt in (0, 1):
        wait_vm(12 + 8 * qt); q_reads(qt); pre_k(1 + qt); e("s_waitcnt lgkmcnt(0)")
        for grp in (0, 1):
            for ks in range(8): e(mf_qk(sb(grp, qt), grp, qt, ks))
        e("s_nop 7")
        for t in max_seq(qt, sb(0, qt), sb(1, qt)): e(t)
        for grp in (0, 1):
            for i in range(4): e(fma1(sb(grp, qt), i, qt))
            for i in range(4): e(exp1(sb(grp, qt), i))
        for grp in (0, 1):
            for h in (0, 1): e(cvt1(P(qt, 0) + 2 * grp + h, sb(grp, qt) + 2 * h))
    e(f"s_lshl_b32 s{sQL}, s{sW}, 2\ns_add_u32 s{sQL}, s{sQL}, {FLAGS}")
    wait_vm(28); stamp(3); q_reads(2); pre_k(3); e("s_waitcnt lgkmcnt(0)")
    return vm

def finish():
    stamp(8)
    e(f"""
    v_mov_b32_e32 v{vT}, {FLAGS}
    ds_read_b128 v[0:3], v{vT}
    s_waitcnt lgkmcnt(0)
    v_or3_b32 v0, v0, v1, v2
    v_or_b32_e32 v0, v0, v3
    s_nop 0
    v_readfirstlane_b32 s3, v0
    s_cmp_eq_u32 s3, 0
    s_cbranch_scc1 L_done
    s_cmp_lg_u32 s{sRUN}, 0
    s_cbranch_scc1 L_done
    """)
    e(f"""
    s_mov_b32 s{sRUN}, 1
    s_lshl_b32 s3, s{sHEAD}, 18
    s_add_u32 s{SF}, s{sPTR+2}, s3
    s_addc_u32 s{SF+1}, s{sPTR+3}, 0
    s_mov_b32 s{SF+2}, {KHEAD}
    s_mov_b32 s{SF+3}, 0x20000
    v_mbcnt_lo_u32_b32 v8, -1, 0
    v_mbcnt_hi_u32_b32 v8, -1, v8
    v_and_b32_e32 v9, 15, v8
    v_lshrrev_b32_e32 v8, 4, v8
    v_lshlrev_b32_e32 v8, 4, v8
    v_lshl_add_u32 v8, v9, 9, v8
    v_mov_b32_e32 v4, 0xff800000
    v_mov_b32_e32 v5, 0xff800000
    v_mov_b32_e32 v6, 0xff800000
    s_mov_b32 s3, 0
    L_fb:
    """)
    for ks in range(8): e(f"buffer_load_dwordx4 {vr(16+4*ks,4)}, v8, {sr(SF,4)}, 0 offen offset:{64*ks}")
    e("v_add_u32_e32 v8, 0x2000, v8\ns_waitcnt vmcnt(0)")
    for qt in range(3):
        for ks in range(8): e(mfma(vr(48 + 4 * qt, 4), vr(16 + 4 * ks, 4), ar(Qf(qt, ks), 4), "0" if ks == 0 else vr(48 + 4 * qt, 4)))
    e("s_nop 7")
    for qt in range(3):
        b = 48 + 4 * qt
        e(f"v_max3_f32 v{4+qt}, v{4+qt}, v{b}, v{b+1}\nv_max3_f32 v{4+qt}, v{4+qt}, v{b+2}, v{b+3}")
    e("s_add_u32 s3, s3, 1\ns_cmp_lt_u32 s3, 32\ns_cbranch_scc1 L_fb")
    for qt in range(3):
        for t in max_fin(qt, 4 + qt, 7): e(t)
    e("s_barrier\ns_branch L_start")
    for t in tailcode: e(t)
    e("L_done:")
    if cfg.stamps or cfg.diag >= 0:
        e("s_waitcnt vmcnt(0)"); stamp(9)
    if cfg.stamps:
        e(f"""
        s_mov_b32 s{SD}, s{sPTR+10}
        s_mov_b32 s{SD+1}, s{sPTR+11}
        s_mov_b32 s{SD+2}, 0x100000
        s_mov_b32 s{SD+3}, 0x20000
        s_lshl_b32 s3, s2, 2
        s_add_u32 s3, s3, s{sW}
        s_lshl_b32 s3, s3, 7
        v_mov_b32_e32 v0, s3
        s_getreg_b32 s{sSTT}, hwreg(HW_REG_XCC_ID)
        s_getreg_b32 s{sSTT+1}, hwreg(HW_REG_HW_ID)
        """)
        for i in range(22):
            e(f"v_mov_b32_e32 v1, s{sCY+i}\nbuffer_store_dword v1, v0, {sr(SD,4)}, 0 offen offset:{4*i}\ns_nop 1")
    if cfg.diag >= 0:
        a, b = (cfg.diag % 100) // 10, cfg.diag % 10
        base = sCY if cfg.diag >= 100 else sRT
        e(f"s_sub_u32 s3, s{base+b}, s{base+a}")
        if cfg.diag >= 100: e("s_mul_hi_u32 s3, s3, 0x19999999")
        if cfg.diagmul != 1: e(f"s_mul_i32 s3, s3, {cfg.diagmul}")
        if cfg.diagwg >= 0: e(f"s_cmp_eq_u32 s2, {cfg.diagwg}\ns_cselect_b32 s3, s3, 0")
        e(f"s_min_u32 s3, s3, 20000\ns_add_u32 s3, s3, {cfg.diagbase}\nL_spin:\ns_memrealtime {sr(sSTT,2)}\ns_waitcnt lgkmcnt(0)\ns_sub_u32 s{sT}, s{sSTT}, s{sRT}\ns_cmp_lt_u32 s{sT}, s3\ns_cbranch_scc1 L_spin")
    e("L_exit:\ns_endpgm")

HEAD = open("standalone__mha_softmax__near_ridge.s.ref").read().split("\n")[:9]
def main():
    ap = argparse.ArgumentParser()
    ap.add_argument("-o", default="standalone__mha_softmax__near_ridge.s")
    ap.add_argument("opts", nargs="*")
    a = ap.parse_args()
    for o in a.opts:
        k, v = o.split("=")
        assert hasattr(cfg, k), k
        setattr(cfg, k, v if isinstance(getattr(cfg, k), str) else type(getattr(cfg, k))(eval(v)))
    e(f"{KN}:")
    vm = prologue()
    main_stream(vm)
    finish()
    txt = "\n".join(HEAD) + "\n; @launch grid=(256,1,1) block=(256,1,1) lds=163840\n"
    txt += f'.amdgcn_target "amdgcn-amd-amdhsa--gfx950"\n.text\n.globl {KN}\n.p2align 8\n.type {KN},@function\n'
    txt += "\n".join(l if l.endswith(":") or l.startswith(".") else "    " + l for l in out) + "\n"
    txt += f""".section .rodata,"a"
.p2align 6
.amdhsa_kernel {KN}
  .amdhsa_next_free_vgpr 512
  .amdhsa_next_free_sgpr 102
  .amdhsa_accum_offset 256
  .amdhsa_group_segment_fixed_size 0
  .amdhsa_kernarg_size 48
  .amdhsa_user_sgpr_count 2
  .amdhsa_user_sgpr_kernarg_segment_ptr 1
  .amdhsa_system_sgpr_workgroup_id_x 1
.end_amdhsa_kernel
"""
    open(a.o, "w").write(txt)
main()
```

```python
import sys, struct, argparse

KN = "standalone__mha_softmax__near_ridge_kernel"
BIAS = 4096
QHEAD = 368 * 512
KHEAD = 512 * 512
def f2u(x): return struct.unpack("<I", struct.pack("<f", x))[0]

SQ, SK, SV, SO, SO2 = 4, 8, 12, 16, 20
sKO = 24
sVO = 28
sW, sW4, sC, sRUN, sQL, sHEAD, sSHORT = 31, 32, 33, 34, 35, 36, 37
sT = 38
sSO = 44
sLIM = 47
sFLAG = 48
sWB = 68
sPC = 50
sPTR = 52
SF = 64
sCY, sRT, sSTT, SD = 70, 80, 90, 96
def P(qt, kt): return 64 * qt + 4 * kt
ACC = 192
def acc(dt, qt): return ACC + 12 * dt + 4 * qt
vKA, vKD, vVD, vVA, vSW, vSR, vST = 240, 242, 243, 244, 245, 246, 247
vNM, vIL, vT = 248, 251, 254
vPF = 252
def Qf(qt, ks): return 32 * qt + 4 * ks
RING = 96
def fr(grp, j): return RING + 32 * (grp & 1) + 4 * j
aL, aONE, aRB = 160, 172, 176
STAGE = 131072
FLAGS = 155648

def vr(b, n): return f"v[{b}:{b+n-1}]"
def ar(b, n): return f"a[{b}:{b+n-1}]"
def sr(b, n): return f"s[{b}:{b+n-1}]"

class Cfg:
    stamps = False
    q_fl = 'nt'
    kv_fl = 'nt'
    o_fl = 'sc0_sc1'
    kspan = 5
    vpat = 5
    stime = '0:49,17:63.5'
    pfn = 0
    pf0 = 6
    pf1 = 36
    pf = '28:29,29:37.8,30:42,31:43.3'
    pf_fl = ''
    pfd_fl = ''
    sstep = 28
    lead = 8
    backlog = 18
    dstep2 = 9
    touch = True
    lim = 60
    verbose = False
    qiss = '22222111122'
    pstamp = False
    nin = 10
    presc = '012'
    dropn = 99
    pstep = '0:4,7:4,8:99,23:99,24:8,27:8,28:99,32:99'
    pstepn = 8
    pre = '0,9'
    ptime = '3:2.2,6:8.2,24:35,25:36.4,26:39.2,27:40.6,28:43,32:51'
    cheat = 0
    trace = False
    novmwait = 99
    stg = '32,40,56'
    dtime = '0:0.38,7:0.6,8:0.88,15:1.1,16:1.38,31:2.4'
    wb = ''
    wbn = 8
    drop = ''
    diagwg = -1
    diagmul = 1
    diagbase = 5000
    diag = -1
cfg = Cfg()
out = []
tailcode = []
def e(s):
    for l in s.split("\n"):
        l = l.strip()
        if l: out.append(l)
def fl(x): return " " + x.replace("_", " ") if x else ""

TRACE_G = [3, 9, 15, 21, 27, 32, 36, 40, 43, 46, 49, 52, 55, 58, 61, 63]
def stamp_txt(i):
    if cfg.trace:
        k = {0: 0, 3: 1, 8: 18, 9: 19}.get(i)
        return "" if k is None else f"s_memrealtime {sr(sSTT+2,2)}\ns_waitcnt lgkmcnt(0)\ns_mov_b32 s{sCY+k}, s{sSTT+2}"
    if cfg.stamps or (cfg.diag >= 0 and i in (0, (cfg.diag % 100) // 10, cfg.diag % 10)):
        return f"s_memtime {sr(sSTT,2)}\ns_memrealtime {sr(sSTT+2,2)}\ns_waitcnt lgkmcnt(0)\ns_mov_b32 s{sCY+i}, s{sSTT}\ns_mov_b32 s{sRT+i}, s{sSTT+2}"
    return ""
def stamp(i): e(stamp_txt(i))

def mfma(d, a, b, c): return f"v_mfma_f32_16x16x32_bf16 {d}, {a}, {b}, {c}"
def ps(qt): return str(qt) in cfg.presc
def usec(grp, qt): return ps(qt) and grp >= 2
def sbuf(grp, qt): return ACC + 12 + 12 * (grp % 3) + 4 * qt
def mf_qk(S, grp, qt, ks):
    c0 = vr(ACC + 4 * qt, 4) if usec(grp, qt) else "0"
    return mfma(vr(S, 4), ar(fr(grp, ks), 4), ar(Qf(qt, ks), 4), c0 if ks == 0 else vr(S, 4))
def rd_k(grp, ks):
    t, kg = grp >> 1, grp & 1
    return f"ds_read_b128 {ar(fr(grp,ks),4)}, v{vKA+(ks&1)} offset:{(t&3)*16384 + kg*8192 + (ks>>1)*1024}"
def rd_v(grp, j, kg):
    kh = (grp >> 2) & 1; kk = 8 * kh + j
    return f"ds_read_b64_tr_b16 {ar(fr(grp,j)+2*kg,2)}, v{vVA} offset:{(kk>>2)*16384 + (4*(kk&3)+2*kg)*1024}"
def dma_txt(n, i):
    if n >= cfg.dropn: return 's_nop 0'
    if n < 16: return f"buffer_load_dwordx4 v{vKD}, {sr(SK,4)}, s{sKO+i} offen offset:{1024*i}{fl(cfg.kv_fl)} lds"
    return f"buffer_load_dwordx4 v{vVD}, {sr(SV,4)}, {'s%d' % (sVO+i-1) if i else '0'} offen offset:{1024*i}{fl(cfg.pfd_fl if str(n) + ':' in cfg.pf else cfg.kv_fl)} lds"
def dma_prep(n):
    off = (n & 7) * 16384
    r = [f"s_add_u32 m0, s{sW4}, {off}" if off else f"s_mov_b32 m0, s{sW4}"]
    if 0 < n < 16: r += [f"s_add_u32 s{SK}, s{SK}, 0x4000", f"s_addc_u32 s{SK+1}, s{SK+1}, 0"]
    elif n > 16:
        if (n & 3): r += [f"s_add_u32 s{SV}, s{SV}, 0x10000", f"s_addc_u32 s{SV+1}, s{SV+1}, 0"]
        else: r += [f"s_sub_u32 s{SV}, s{SV}, {3*65536-128}", f"s_subb_u32 s{SV+1}, s{SV+1}, 0"]
    return r
def max_seq(qt, Sa, Sb):
    t, u = vT, vT + 1
    return [f"v_max3_f32 v{t}, v{Sa}, v{Sa+1}, v{Sa+2}", f"v_max3_f32 v{t}, v{t}, v{Sa+3}, v{Sb}",
            f"v_max3_f32 v{t}, v{t}, v{Sb+1}, v{Sb+2}", f"v_max_f32_e32 v{t}, v{t}, v{Sb+3}"] + max_fin(qt, t, u)
def max_fin(qt, t, u):
    return [f"v_mov_b32_e32 v{u}, v{t}", "s_nop 1", f"v_permlane32_swap_b32_e32 v{t}, v{u}", f"v_max_f32_e32 v{t}, v{t}, v{u}",
            f"v_mov_b32_e32 v{u}, v{t}", "s_nop 1", f"v_permlane16_swap_b32_e32 v{t}, v{u}", f"v_max_f32_e32 v{t}, v{t}, v{u}",
            ] + ([f"v_min_f32_e64 v{vNM+qt}, v{vNM+qt}, -v{t}"] if ps(qt) else
                 [f"v_mul_f32_e64 v{t}, v{t}, -s{sC}", f"v_min_f32_e32 v{vNM+qt}, v{vNM+qt}, v{t}"])
def cinit(qt): return [f"v_mov_b32_e32 v{ACC+4*qt+i}, v{vNM+qt}" for i in range(4)] if ps(qt) else []
def fma1(S, i, qt):
    return f"v_add_f32_e32 v{S+i}, v{S+i}, v{vNM+qt}" if ps(qt) else f"v_fma_f32 v{S+i}, v{S+i}, s{sC}, v{vNM+qt}"
def exp1(S, i): return f"v_exp_f32_e32 v{S+i}, v{S+i}"
def cvt1(d, a): return f"v_cvt_pk_bf16_f32 v{d}, v{a}, v{a+1}"

class It:
    def __init__(s, text, kind, early=0, deps=(), prio=0, dead=None, ctr=None, mf=None):
        s.text, s.kind, s.early, s.deps, s.prio, s.dead, s.ctr = text, kind, early, list(deps), prio, dead, ctr
        s.gap = None; s.mf = mf
        s.cost = {"valu": 1, "exp": 2, "lds": 1, "full": 2, "scalar": 0}[kind]
class Wait(It):
    def __init__(s, lgkm=None, vm=None, **kw):
        It.__init__(s, None, "scalar", **kw); s.tg = {"vm": vm, "lgkm": lgkm}

class Stream:
    def __init__(s):
        s.mf = []; s.items = []; s.gaps = {}
        s.issued = {"lgkm": [], "vm": []}
    def g(s, i): return s.gaps.setdefault(i, dict(sh=[], mem=[], valu=[], bar=False, raw=[]))
    def add(s, it): s.items.append(it); return it
    def fix(s, it, gap):
        it.gap = gap
        s.g(gap)["sh" if it.kind == "scalar" else "mem" if it.kind in ("lds", "full") else "valu"].append(it)
        return it
    def used(s, i):
        G = s.g(i); return sum(x.cost for x in G["mem"] + G["valu"]) + max(0, len(G["sh"]) - 1)
    def run(s, ngaps_extra=400):
        pend = sorted(s.items, key=lambda x: x.prio)
        n = len(s.mf)
        def dist(m, i):
            c = min(i, n - 1) - m
            for k in range(m, i + 1):
                G = s.g(k); c += len(G["sh"]) + len(G["mem"]) + len(G["valu"]) + (8 if G["raw"] and k < i else 0)
            return c
        def ok(x, i):
            return x.early <= i and all(d.gap is not None and d.gap + m <= i for d, m in x.deps) and (x.mf is None or (i > x.mf and dist(x.mf, i) >= 8))
        i = 0
        while pend:
            tailmode = i >= n - 1
            G = s.g(i)
            def take(x): pend.remove(x); s.fix(x, i); assert x.dead is None or i <= x.dead, (x.text, i, x.dead)
            if True:
                placed_full = False
                if s.used(i) == 0 and not G["bar"]:
                    for x in pend:
                        if x.kind == "full" and ok(x, i) and (not G["sh"] or x.text.startswith("ds_")):
                            take(x); placed_full = True; break
                if not G["sh"] and not (placed_full and not G["mem"][0].text.startswith("ds_")):
                    for x in pend:
                        if x.kind == "scalar" and ok(x, i): take(x); break
                if not placed_full:
                    prevx = any(y.text.startswith("ds_write") for y in s.g(i - 1)["mem"])
                    for x in list(pend):
                        if x.kind == "lds" and ok(x, i) and s.used(i) < 2 and not prevx and not G["bar"]: take(x)
                    while True:
                        back = sum(x.cost for x in pend if x.kind in ("valu", "exp") and x.early <= i)
                        budget = 1 if G["bar"] else 3 if back > cfg.backlog else 2
                        free = budget - s.used(i)
                        el = [x for x in pend if x.kind in ("valu", "exp") and ok(x, i) and x.cost <= free]
                        if not el: break
                        ex = [x for x in el if x.kind == "exp"]
                        take(ex[0] if ex else el[0])
            i += 1
            assert i < n + ngaps_extra, [x.text for x in pend][:5]
        s.last = max(s.gaps)
    def emit1(s, x):
        if isinstance(x, Wait):
            w = []
            for c, t in x.tg.items():
                if t is None: continue
                q = s.issued[c]
                w.append(f"{c}cnt({min(len(q) - 1 - q.index(t), (0 if getattr(x, 'zero', 0) else 15) if c == 'lgkm' else 63)})")
            e("s_waitcnt " + " ".join(w))
        else:
            e("s_nop 0" if cfg.drop and x.text.startswith(tuple(cfg.drop.split(","))) else x.text)
            if x.ctr: s.issued[x.ctr].append(x)
    def emit(s):
        over = 0; line = []
        for i in range(s.last + 1):
            if i < len(s.mf): e(s.mf[i])
            G = s.g(i)
            for x in G["sh"] + G["mem"] + G["valu"]: s.emit1(x)
            for t in G["raw"]: e(t)
            if "post" in G: e(G["post"])
            u = s.used(i); over += max(0, u - 2) if i < len(s.mf) else 0
            line.append(("B" if G["bar"] else "." if G["sh"] else "") + "".join({"lds": "r", "full": x.text[:8] == "ds_write" and "x" or x.text[:8] == "buffer_l" and "D" or x.text[:3] == "s_b" and "B" or "S", "valu": "a", "exp": "E"}[x.kind] for x in G["mem"] + G["valu"]))
        if cfg.verbose:
            for k in range(0, len(line), 25): print(k, "|".join(line[k:k + 25]), file=sys.stderr)
        print(f"mfma {len(s.mf)} gaps {s.last+1} overflow slots {over}", file=sys.stderr)

def main_stream(pre_vm, lastdma):
    S = Stream()
    S.issued["vm"] = list(pre_vm)
    npre = len(cfg.pre.split(','))
    gstart = {}
    chain_end = {}
    pdone = {}
    lpos = {}
    def l_mfma(qt, kt):
        lpos[(qt, kt)] = len(S.mf)
        S.mf.append(mfma(ar(aL + 4 * qt, 4), ar(aONE, 4), vr(P(qt, kt), 4), "0" if kt == 0 else ar(aL + 4 * qt, 4)))
    for grp in range(2, 32):
        gstart[grp] = len(S.mf)
        for qt in range(3):
            for ks in range(8): S.mf.append(mf_qk(sbuf(grp, qt), grp, qt, ks))
            chain_end[(grp, qt)] = len(S.mf) - 1
            if grp & 1: l_mfma(qt, (grp >> 1) - 1)
    for g2 in range(32):
        grp = 32 + g2; ds, kh, dt = g2 >> 3, (g2 >> 2) & 1, g2 & 3
        gstart[grp] = len(S.mf)
        for qt in range(3):
            for j in range(8):
                kk = 8 * kh + j; a = acc(dt, qt)
                S.mf.append(mfma(vr(a, 4), ar(fr(grp, j), 4), vr(P(qt, kk), 4), "0" if kk == 0 else vr(a, 4)))
            chain_end[(grp, qt)] = len(S.mf) - 1
            if g2 == 1: l_mfma(qt, 15)
    gstart[64] = len(S.mf)
    bars = []
    for t in range(2, 16): bars.append((gstart[2 * t - 1], t, t - 1))
    bars.append((gstart[31], 17, 15))
    for u in range(1, 8): bars.append((gstart[32 + 4 * u - 1], 17 + 2 * u, 15 + 2 * u))
    baritems = []; endwait = {}
    for gp, pub, freed in bars:
        w = Wait(); S.fix(w, gp - 1); endwait[gp] = w
        b = It("s_barrier", "scalar"); S.fix(b, gp); S.g(gp)["bar"] = True
        baritems.append((w, b, pub, freed))
    bargaps = {b[0] for b in bars}
    for grp in range(3, 64):
        g0, g1 = gstart[grp - 1], gstart[grp]
        first = g0 + (1 if g0 in bargaps else 0)
        if grp < 32:
            txt = [rd_k(grp, ks) for ks in range(8)]
            if grp == 2: pos = [first + k // 2 for k in range(8)]
            else: pos = [first + (k * cfg.kspan) // 2 for k in range(8)]
            if grp % 8 == 0:
                for r in (0, 1): S.fix(It(f"v_xor_b32_e32 v{vKA+r}, 0x10000, v{vKA+r}", "valu"), g0 - 2 + r)
        else:
            txt = [rd_v(grp, j, kg) for j in range(8) for kg in (0, 1)]
            offs = [[0, 0, 1, 2, 5, 6, 6, 7, 10, 11, 11, 12, 15, 16, 16, 17],
                    [0, 0, 1, 2, 2, 4, 5, 5, 6, 8, 9, 9, 10, 12, 13, 13],
                    [0, 1, 2, 3, 4, 5, 6, 7, 8, 9, 10, 11, 12, 13, 14, 15],
                    [0, 0, 1, 1, 3, 3, 4, 4, 6, 6, 7, 7, 9, 9, 10, 10],
                    [0, 1, 2, 3, 4, 7, 8, 9, 10, 11, 12, 15, 16, 17, 18, 19],
                    [0, 1, 2, 3, 5, 6, 7, 8, 10, 11, 12, 13, 15, 16, 17, 18]][cfg.vpat]
            pos = [g0 + 1 + o for o in offs]
            if grp > 32:
                x = (((grp ^ (grp - 1)) & 3) << 5) | (0x10000 if (grp & 7) == 0 else 0)
                S.fix(It(f"v_xor_b32_e32 v{vVA}, {hex(x)}, v{vVA}", "valu"), g0 - 1)
        its = [S.fix(It(t, "lds", ctr="lgkm"), p) for t, p in zip(txt, pos)]
        if grp == 2:
            S.fix(Wait(its[3]), g1 - 1); S.fix(Wait(its[-1]), g1 + 2)
        elif g1 in endwait: endwait[g1].tg["lgkm"] = its[-1]
        else: endwait[g1] = S.fix(Wait(its[-1]), g1 - 1)
        if cfg.trace and grp in TRACE_G:
            S.fix(It(f"s_memrealtime {sr(sSTT+2,2)}", "scalar"), g1 - 5); endwait[g1].zero = True
            S.fix(It(f"s_mov_b32 s{sCY+2+TRACE_G.index(grp)}, s{sSTT+2}", "scalar"), g1 + 1)
    def piecewise(spec, k):
        pts = [tuple(map(float, x.split(":"))) for x in spec.split(",")]
        for (k0, p0), (k1, p1) in zip(pts, pts[1:]):
            if k0 <= k <= k1: return int(gstart[40] + 192 * (p0 + (p1 - p0) * (k - k0) / (k1 - k0) - 1))
    def gpos(p):
        g = int(p); return int(gstart[g] + (p - g) * (gstart[g + 1] - gstart[g]))
    def pw(spec, k):
        pts = [tuple(map(float, x.split(":"))) for x in spec.split(",")]
        for (k0, p0), (k1, p1) in zip(pts, pts[1:]):
            if k0 <= k <= k1: return p0 + (p1 - p0) * (k - k0) / (k1 - k0)
    prev = None
    for n in range(npre + 1, 32):
        need = max(n - 8 - (cfg.cheat if n >= 24 else 0), 0)
        gate = next(b for (w, b, pub, freed) in baritems if freed >= need)
        if n <= 8: gate = It('', 'scalar'); gate.gap = -1
        tgt = max(gpos(pw(cfg.ptime, n)), gate.gap + 1)
        step = max(2, min(int(pw(cfg.pstep, n)), (gpos(pw(cfg.ptime, n + 1)) - tgt) // 4))
        for t in dma_prep(n):
            prev = S.add(It(t, "scalar", early=tgt - 6, deps=[(prev, 1)] if prev else [], prio=tgt - 6))
        for i in range(4):
            prev = S.add(It(dma_txt(n, i), "full", early=tgt + i * step, deps=[(prev, 1), (gate, 1)], prio=tgt + i * step - 30, ctr="vm"))
        lastdma[n] = prev
    for (w, b, pub, freed) in baritems:
        if pub < cfg.novmwait: w.tg["vm"] = lastdma[pub]
        if pub > npre: lastdma[pub].dead = b.gap - 2
    if cfg.pf:
        pts = [x.split(":") for x in cfg.pf.split(",")]
        pfp = S.add(It(f"v_accvgpr_read_b32 v{vKD}, a251", "valu", gstart[28], [(lastdma[15], 1)], prio=gstart[28]))
        for n, pos in pts:
            n = int(n) - 16; g = gpos(float(pos))
            x = S.add(It(f"s_mov_b32 s{sT}, {(n & 3) * 65536 + (n >> 2) * 128}", "scalar", g - 4, [(pfp, 1)], prio=g - 4))
            pfp = S.add(It(f"buffer_load_dword a250, v{vKD}, {sr(SF,4)}, s{sT} offen{fl(cfg.pf_fl)}", "full", g, [(x, 1)], prio=g, ctr="vm"))
    def soft(grp, qt, extra=()):
        Sb = sbuf(grp, qt); e0 = chain_end[(grp, qt)] + 1; kt, kg = grp >> 1, grp & 1
        reuse = gstart[grp + 3] + 8 * qt - 1 if grp + 3 < 32 else gstart[33 + grp % 3] + 8 * qt - 1
        if usec(grp, qt):
            x = [S.add(It(exp1(Sb, i), "exp", e0, prio=e0 + 0.1 * i, mf=e0 - 1)) for i in range(4)]
        else:
            f = [S.add(It(fma1(Sb, i, qt), "valu", e0, extra, prio=e0 + 0.1 * i, mf=e0 - 1)) for i in range(4)]
            x = [S.add(It(exp1(Sb, i), "exp", e0, [(f[i], 0)], prio=e0 + 0.1 * i)) for i in range(4)]
        dead = min(reuse, lpos[(qt, kt)] - 2)
        for h in (0, 1):
            S.add(It(cvt1(P(qt, kt) + 2 * kg + h, Sb + 2 * h), "valu", e0, [(x[2 * h], 1), (x[2 * h + 1], 1)], prio=e0 + 6 + h, dead=dead))
    for grp in range(2, 32):
        for qt in range(3): soft(grp, qt)
    e0 = lpos[(2, 15)] + 1
    rds = [S.add(It(f"v_accvgpr_read_b32 v{vIL+qt}, a{aL+4*qt}", "valu", e0, prio=e0, mf=e0 - 1)) for qt in range(3)]
    mx = S.add(It(f"v_max3_f32 v{vT}, v{vIL}, v{vIL+1}, v{vIL+2}", "valu", e0, [(r, 0) for r in rds], prio=e0 + 1))
    rc = [S.add(It(f"v_rcp_f32_e32 v{vIL+qt}, v{vIL+qt}", "exp", e0, [(mx, 0)], prio=e0 + 2)) for qt in range(3)]
    cm = S.add(It(f"v_cmp_nlt_f32_e64 {sr(sFLAG,2)}, v{vT}, s{sLIM}", "valu", e0, [(mx, 0)], prio=e0 + 3))
    c1 = S.add(It(f"v_mov_b32_e32 v{vT}, s{sFLAG}", "valu", e0, [(cm, 2)], prio=e0 + 4))
    c2 = S.add(It(f"v_or_b32_e32 v{vT}, s{sFLAG+1}, v{vT}", "valu", e0, [(c1, 0)], prio=e0 + 5))
    c3 = S.add(It(f"v_mov_b32_e32 v{vT+1}, s{sQL}", "valu", e0, prio=e0 + 5))
    fw = S.add(It(f"ds_write_b32 v{vT+1}, v{vT}", "full", e0, [(c2, 1), (c3, 1)], prio=e0 + 6, ctr="lgkm", dead=gstart[38]))
    def starget(k): return gpos(pw(cfg.stime, k)) if k < 18 else 0
    prevw = None; prevst = [None] * 6; prevrb = []; laststore = None
    for ds in range(4):
        for dt in range(4):
            grp = 32 + 8 * ds + 4 + dt
            xo = None
            if ds or dt:
                x = ((dt ^ (dt - 1)) & 3) << 5
                xo = S.add(It(f"v_xor_b32_e32 v{vSW}, {hex(x)}, v{vSW}", "valu", gstart[grp], [(prevw, 1)], prio=gstart[grp]))
            for qt in range(3):
                a = acc(dt, qt); e0 = chain_end[(grp, qt)] + 1
                last = ds == 3 and dt == 3 and qt == 2
                m = [S.add(It(f"v_mul_f32_e32 v{a+i}, v{a+i}, v{vIL+qt}", "valu", e0, [(rc[qt], 1)], prio=e0 + 0.1 * i, mf=e0 - 1)) for i in range(4)]
                c0 = S.add(It(cvt1(a, a), "valu", e0, [(m[0], 0), (m[1], 0)], prio=e0 + 1))
                c1 = S.add(It(cvt1(a + 1, a + 2), "valu", e0, [(m[2], 0), (m[3], 0), (c0, 0)], prio=e0 + 1.1))
                dead = gstart[grp + 4] + 8 * qt - 1 if ds < 3 else None
                prevw = S.add(It(f"ds_write_b64 v{vSW}, {vr(a,2)} offset:{qt*2048}", "full", e0, [(c1, 1)] + ([(xo, 1)] if xo else []) + ([(prevw, 1)] if prevw else []) + [(r, 1) for r in prevrb[:6 * ds]],
                                 prio=e0 - 50, ctr="lgkm", dead=dead))
                if dt == 3:
                    for h in (0, 1):
                        rb = 2 * qt + h
                        r = S.add(It(f"ds_read_b128 {ar(aRB+24*(ds%3)+4*rb,4)}, v{vSR} offset:{rb*1024}", "lds", e0, [(prevw, 1)] + ([(prevst[rb], 2)] if ds == 3 else []), prio=e0, ctr="lgkm"))
                        prevrb.append(r)
                        w = S.add(Wait(r, deps=[(r, 1 if last else 5)], prio=e0))
                        srd, so = (SO, rb) if qt < 2 else (SO2, h)
                        st = S.add(It(f"buffer_store_dwordx4 {ar(aRB+24*(ds%3)+4*rb,4)}, v{vST}, {sr(srd,4)}, {'s%d' % (sSO+so-1) if so else '0'} offen offset:{ds*128}{fl(cfg.o_fl.split(',')[ds % len(cfg.o_fl.split(','))])}",
                                              "full", max(e0, starget(6 * ds + rb)), [(w, 1)] + ([(laststore, cfg.sstep if ds < 3 and not cfg.stime else 1)] if laststore else []), prio=e0 - 20, ctr="vm"))
                        laststore = st
                        if ds == 0: prevst[rb] = st
    S.g(len(S.mf) - 1)["raw"].append("s_nop 7")
    if cfg.wb:
        for k, p in enumerate(map(float, cfg.wb.split(","))):
            g = int(gstart[40] + 192 * (p - 1))
            S.g(g)["post"] = f"s_cmp_eq_u32 s{sWB}, {k}\ns_cbranch_scc1 L_wb{k}\nL_wbr{k}:"
            tailcode.append(f"L_wb{k}:\nbuffer_wbl2 sc1\ns_branch L_wbr{k}")
    for i, g in zip((5, 6, 7), map(int, cfg.stg.split(','))):
        t = stamp_txt(i)
        if t and not cfg.pstamp: S.g(gstart[g] - 1)["raw"].append(t)
    S.run(); S.emit()

def prologue():
    stamp(0)
    e(f"""
    s_cmp_ge_u32 s2, 256
    s_cbranch_scc1 L_exit
    s_load_dwordx8 {sr(sPTR,8)}, s[0:1], 0
    v_lshrrev_b32_e32 v1, 6, v0
    s_mov_b32 s{sRUN}, 0
    v_readfirstlane_b32 s{sW}, v1
    """)
    if cfg.stamps: e(f"s_load_dwordx4 {sr(sPTR+8,4)}, s[0:1], 32")
    if cfg.touch:
        e(f"""
        s_getpc_b64 {sr(sPC,2)}
        L_pc:
        v_lshlrev_b32_e32 v2, 7, v0
        v_add_u32_e32 v3, 0x8000, v2
        v_min_u32_e32 v2, L_exit-L_pc, v2
        v_min_u32_e32 v3, L_exit-L_pc, v3
        global_load_dword v4, v2, {sr(sPC,2)}
        global_load_dword v5, v3, {sr(sPC,2)}
        """)
    for qt in range(3): e(f"v_mov_b32_e32 v{vNM+qt}, 0x7f800000")
    L = 8
    e("L_start:")
    e(f"""
    v_mbcnt_lo_u32_b32 v{L}, -1, 0
    v_mbcnt_hi_u32_b32 v{L}, -1, v{L}
    s_lshr_b32 s{sHEAD}, s2, 4
    s_lshl_b32 s{sHEAD}, s{sHEAD}, 3
    s_and_b32 s3, s2, 7
    s_add_u32 s{sHEAD}, s{sHEAD}, s3
    s_bfe_u32 s3, s2, 0x10003
    s_lshl_b32 s3, s3, 2
    s_add_u32 s3, s3, s{sW}
    s_cmp_eq_u32 s3, 7
    s_cselect_b32 s{sSHORT}, 0, -1
    s_mul_i32 s3, s3, 24576
    s_mul_i32 s{sT}, s{sHEAD}, {QHEAD}
    s_add_u32 s{sT}, s{sT}, s3
    s_lshl_b32 s{sT+1}, s{sHEAD}, 18
    s_lshl_b32 s{sW4}, s{sW}, 12
    v_lshrrev_b32_e32 v9, 3, v{L}
    v_and_b32_e32 v10, 7, v{L}
    v_lshrrev_b32_e32 v11, 1, v9
    v_xor_b32_e32 v12, v10, v11
    v_lshlrev_b32_e32 v12, 4, v12
    v_lshl_add_u32 v12, v9, 9, v12
    v_xor_b32_e32 v13, 0x1040, v12
    s_and_b32 s3, s{sW}, 1
    s_lshl_b32 s3, s3, 6
    s_or_b32 s3, s3, s{sW4}
    v_xor_b32_e32 v{vKD}, s3, v12
    s_mul_i32 s{sQL}, s{sW}, 24576
    s_add_u32 s{sQL}, s{sQL}, 0x10000
    """)
    for lc in range(4): e(f"s_mov_b32 s{sKO+lc}, {BIAS - 896*lc}")
    e(f"""
    s_mov_b32 s{SK+2}, {BIAS + 16384}
    s_mov_b32 s{SK+3}, 0x20000
    s_mov_b32 s{SQ+2}, {BIAS + 8192}
    s_mov_b32 s{SQ+3}, 0x20000
    s_mov_b32 m0, s{sW4}
    s_waitcnt lgkmcnt(0)
    """)
    stamp(1)
    e(f"""
    s_add_u32 s{SK}, s{sPTR+2}, s{sT+1}
    s_addc_u32 s{SK+1}, s{sPTR+3}, 0
    s_sub_u32 s{SK}, s{SK}, {BIAS}
    s_subb_u32 s{SK+1}, s{SK+1}, 0
    """)
    vm = []
    def vmem(t): e(t); vm.append(It(t, "full"))
    for i in range(4): vmem(dma_txt(0, i))
    e(f"""
    s_add_u32 s{SQ}, s{sPTR}, s{sT}
    s_addc_u32 s{SQ+1}, s{sPTR+1}, 0
    s_sub_u32 s{SQ}, s{SQ}, {BIAS}
    s_subb_u32 s{SQ+1}, s{SQ+1}, 0
    """)
    rest = f"""
    s_add_u32 s{SV}, s{sPTR+4}, s{sT+1}
    s_addc_u32 s{SV+1}, s{sPTR+5}, 0
    s_mov_b32 s{SV+2}, 65152
    s_mov_b32 s{SV+3}, 0x20000
    s_add_u32 s{SO}, s{sPTR+6}, s{sT}
    s_addc_u32 s{SO+1}, s{sPTR+7}, 0
    s_mov_b32 s{SO+2}, 16384
    s_mov_b32 s{SO+3}, 0x20000
    s_add_u32 s{SO2}, s{SO}, 16384
    s_addc_u32 s{SO2+1}, s{SO+1}, 0
    s_and_b32 s{SO2+2}, s{sSHORT}, 8192
    s_mov_b32 s{SO2+3}, 0x20000
    s_mov_b32 s{SF}, s{SV}
    s_mov_b32 s{SF+1}, s{SV+1}
    s_mov_b32 s{SF+2}, {KHEAD}
    s_mov_b32 s{SF+3}, 0x20000
    s_bfe_u32 s3, s2, 0x10003
    s_lshl_b32 s3, s3, 2
    s_add_u32 s3, s3, s{sW}
    s_lshl_b32 s3, s3, 15
    s_lshr_b32 s3, s3, 2
    v_lshrrev_b32_e32 v14, 2, v{L}
    v_lshl_add_u32 v14, v14, 9, s3
    v_and_b32_e32 v15, 3, v{L}
    v_lshl_add_u32 v14, v15, 2, v14
    v_accvgpr_write_b32 a251, v14
    s_lshr_b32 s{sWB}, s2, 3
    s_cmp_eq_u32 s{sW}, 0
    s_cselect_b32 s{sWB}, s{sWB}, -1
    s_mov_b32 s{sVO}, 3072
    s_mov_b32 s{sVO+1}, 6144
    s_mov_b32 s{sVO+2}, 9216
    s_mov_b32 s{sSO}, 4096
    s_mov_b32 s{sSO+1}, 8192
    s_mov_b32 s{sSO+2}, 12288
    s_mov_b32 s{sC}, {f2u(1.4426950408889634 / 16)}
    s_mov_b32 s{sLIM}, {f2u(2.0 ** cfg.lim)}
    v_lshlrev_b32_e32 v14, 1, v11
    v_xor_b32_e32 v14, v14, v10
    v_lshlrev_b32_e32 v14, 4, v14
    v_lshl_add_u32 v14, v9, 9, v14
    s_lshl_b32 s3, s{sW}, 14
    v_add_u32_e32 v{vVD}, s3, v14
    v_lshlrev_b32_e32 v14, 4, v10
    v_lshl_add_u32 v{vST}, v9, 9, v14
    s_mul_i32 s3, s{sW}, 6144
    s_add_u32 s3, s3, {STAGE}
    v_xor_b32_e32 v14, v9, v10
    v_lshlrev_b32_e32 v14, 4, v14
    v_lshl_add_u32 v14, v9, 7, v14
    v_add_u32_e32 v{vSR}, s3, v14
    v_lshrrev_b32_e32 v15, 5, v{L}
    v_xor_b32_e32 v14, v15, v10
    v_lshlrev_b32_e32 v14, 4, v14
    v_and_b32_e32 v16, 15, v{L}
    v_lshl_add_u32 v14, v16, 7, v14
    v_bfe_u32 v17, v{L}, 4, 1
    v_lshl_add_u32 v14, v17, 3, v14
    v_add_u32_e32 v{vSW}, s3, v14
    v_bfe_u32 v14, v{L}, 2, 3
    v_lshlrev_b32_e32 v18, 10, v15
    v_lshl_add_u32 v18, v14, 7, v18
    v_lshrrev_b32_e32 v14, 1, v14
    v_lshl_add_u32 v18, v14, 5, v18
    v_and_b32_e32 v14, 3, v{L}
    v_lshl_add_u32 v{vVA}, v14, 3, v18
    v_bfe_u32 v14, v{L}, 3, 1
    v_lshlrev_b32_e32 v18, 12, v14
    v_lshl_add_u32 v18, v10, 7, v18
    v_bfe_u32 v14, v{L}, 1, 3
    v_lshrrev_b32_e32 v19, 4, v{L}
    v_xor_b32_e32 v14, v14, v19
    v_lshl_add_u32 v{vKA}, v14, 4, v18
    v_xor_b32_e32 v{vKA+1}, 64, v{vKA}
    v_add_u32_e32 v20, s{sQL}, v{vKA}
    v_add_u32_e32 v21, s{sQL}, v{vKA+1}
    v_mov_b32_e32 v22, s{sC}
    v_mov_b32_e32 v14, 0x3f803f80
    v_accvgpr_write_b32 a{aONE}, v14
    v_accvgpr_write_b32 a{aONE+1}, v14
    v_accvgpr_write_b32 a{aONE+2}, v14
    v_accvgpr_write_b32 a{aONE+3}, v14
    """
    mark = {}
    def pst(i):
        if cfg.pstamp: stamp(i)
    def q_loads(qt):
        r = []
        order = [(par, lc) for lc in range(4) for par in ((0, 1) if lc % 2 == 0 else (1, 0))]
        last = None
        for k, (par, lc) in enumerate(order):
            pre = []
            if par != last: pre.append(f"s_add_u32 m0, s{sQL}, {(2*qt+par)*4096}")
            last = par
            if k == 0 and qt: pre += [f"s_add_u32 s{SQ}, s{SQ}, 8192", f"s_addc_u32 s{SQ+1}, s{SQ+1}, 0"]
            if k == 0 and qt == 2: pre.append(f"s_and_b32 s{SQ+2}, s{SQ+2}, s{sSHORT}")
            if len(pre) == 1: pre.append("s_nop 0")
            r.append((pre, f"buffer_load_dwordx4 v{12+par}, {sr(SQ,4)}, s{sKO+lc} offen offset:{1024*lc}{fl(cfg.q_fl)} lds", ("q", qt, k)))
        return r
    def k_loads(n): return [(dma_prep(n) if i == 0 else [], dma_txt(n, i), ("k", n, i)) for i in range(4)]
    def issue(x):
        for t in x[0]: e(t)
        vmem(x[1]); mark[x[2]] = len(vm)
    def wait_vm(key): e(f"s_waitcnt vmcnt({len(vm) - mark[key]})")
    def sprinkle(body, loads, lo=0.0, hi=1.0):
        pos = [int(len(body) * (lo + (hi - lo) * k / max(1, len(loads) - 1))) for k in range(len(loads))]
        for i, t in enumerate(body + [""]):
            while pos and pos[0] <= i: pos.pop(0); issue(loads.pop(0))
            e(t)
    def q_read(qt, ks): return f"ds_read_b128 {vr(24+4*ks,4) if ps(qt) else ar(Qf(qt,ks),4)}, v{20+(ks&1)} offset:{qt*8192 + (ks>>1)*1024}"
    def q_scale(qt, ks):
        r = []
        if not ps(qt): return r
        for j in range(4):
            r += [f"v_lshlrev_b32_e32 v{56+2*j}, 16, v{24+4*ks+j}", f"v_and_b32_e32 v{57+2*j}, 0xffff0000, v{24+4*ks+j}"]
        r += [f"v_pk_mul_f32 {vr(56+2*j,2)}, {vr(56+2*j,2)}, {vr(22,2)} op_sel_hi:[1,0]" for j in range(4)]
        r += [cvt1(56 + 2 * j, 56 + 2 * j) for j in range(4)]
        r += [f"v_accvgpr_write_b32 a{Qf(qt,ks)+j}, v{56+2*j}" for j in range(4)]
        return r
    def soft0(qt):
        r = []
        for grp in (0, 1):
            r += [fma1(sbuf(grp, qt), i, qt) for i in range(4)] + [exp1(sbuf(grp, qt), i) for i in range(4)]
        return r + [cvt1(P(qt, 0) + 2 * grp + h, sbuf(grp, qt) + 2 * h) for grp in (0, 1) for h in (0, 1)]
    def tile0(qt):
        r = [q_read(qt, ks) for ks in range(8)]
        for ks in range(8): r += [f"s_waitcnt lgkmcnt({7-ks})"] + q_scale(qt, ks)
        r.append("s_nop 1")
        r += [mf_qk(sbuf(grp, qt), grp, qt, ks) for grp in (0, 1) for ks in range(8)] + ["s_nop 7"]
        return r + max_seq(qt, sbuf(0, qt), sbuf(1, qt)) + cinit(qt) + soft0(qt)
    mark[("k", 0, 3)] = 4
    todo = q_loads(0) + q_loads(1) + q_loads(2)
    kq = {n: k_loads(n) for n in range(1, len(cfg.pre.split(',')) + 1)}
    kat = dict(enumerate(map(int, cfg.pre.split(',')), 1))
    for _ in range(cfg.nin - 4): issue(todo.pop(0))
    e(rest)
    wait_vm(("k", 0, 3)); e("s_barrier")
    for _ in range(4): issue(todo.pop(0))
    for grp in (0, 1):
        for ks in range(8): e(rd_k(grp, ks))
    stamp(2)
    for i in range(12):
        qt, lc = i >> 2, i & 3
        wait_vm(("q", qt, 2 * lc + 1))
        if i == 11: stamp(3)
        if i in (0, 4, 8): pst(5 + i // 4)
        e(q_read(qt, 2 * lc)); e(q_read(qt, 2 * lc + 1))
        for _ in range(int(cfg.qiss[i]) if i < 11 else 9):
            for n in kq:
                if not todo and kq[n] and kat[n] <= i: todo, kq[n] = kq[n], []
            if todo: issue(todo.pop(0))
        if i == 11:
            for n in kq:
                for x in kq[n]: issue(x)
        for k in (0, 1):
            e(f"s_waitcnt lgkmcnt({1-k})")
            for t in q_scale(qt, 2 * lc + k): e(t)
        e("s_nop 1")
        for grp in (0, 1):
            for k in (0, 1): e(mf_qk(sbuf(grp, qt), grp, qt, 2 * lc + k))
        if lc == 3 and qt < 2:
            e("s_nop 7")
            for t in max_seq(qt, sbuf(0, qt), sbuf(1, qt)) + cinit(qt) + soft0(qt): e(t)
    e(f"s_lshl_b32 s{sQL}, s{sW}, 2\ns_add_u32 s{sQL}, s{sQL}, {FLAGS}")
    pst(8)
    e("s_nop 7")
    for t in max_seq(2, sbuf(0, 2), sbuf(1, 2)): e(t)
    wait_vm(("k", 1, 3)); e("s_barrier")
    for ks in range(8): e(rd_k(2, ks))
    for t in cinit(2) + soft0(2): e(t)
    e("s_waitcnt lgkmcnt(0)")
    stamp(4)
    return vm, {n: vm[mark[("k", n, 3)] - 1] for n in range(1, len(cfg.pre.split(',')) + 1)}

def finish():
    if not cfg.pstamp: stamp(8)
    e(f"""
    v_mov_b32_e32 v{vT}, {FLAGS}
    ds_read_b128 v[0:3], v{vT}
    s_waitcnt lgkmcnt(0)
    v_or3_b32 v0, v0, v1, v2
    v_or_b32_e32 v0, v0, v3
    s_nop 0
    v_readfirstlane_b32 s3, v0
    s_cmp_eq_u32 s3, 0
    s_cbranch_scc1 L_done
    s_cmp_lg_u32 s{sRUN}, 0
    s_cbranch_scc1 L_done
    """)
    e(f"""
    s_mov_b32 s{sRUN}, 1
    s_lshl_b32 s3, s{sHEAD}, 18
    s_add_u32 s{SF}, s{sPTR+2}, s3
    s_addc_u32 s{SF+1}, s{sPTR+3}, 0
    s_mov_b32 s{SF+2}, {KHEAD}
    s_mov_b32 s{SF+3}, 0x20000
    v_mbcnt_lo_u32_b32 v8, -1, 0
    v_mbcnt_hi_u32_b32 v8, -1, v8
    v_and_b32_e32 v9, 15, v8
    v_lshrrev_b32_e32 v8, 4, v8
    v_lshlrev_b32_e32 v8, 4, v8
    v_lshl_add_u32 v8, v9, 9, v8
    v_mov_b32_e32 v4, 0xff800000
    v_mov_b32_e32 v5, 0xff800000
    v_mov_b32_e32 v6, 0xff800000
    s_mov_b32 s3, 0
    L_fb:
    """)
    for ks in range(8): e(f"buffer_load_dwordx4 {vr(16+4*ks,4)}, v8, {sr(SF,4)}, 0 offen offset:{64*ks}")
    e("v_add_u32_e32 v8, 0x2000, v8\ns_waitcnt vmcnt(0)")
    for qt in range(3):
        for ks in range(8): e(mfma(vr(48 + 4 * qt, 4), vr(16 + 4 * ks, 4), ar(Qf(qt, ks), 4), "0" if ks == 0 else vr(48 + 4 * qt, 4)))
    e("s_nop 7")
    for qt in range(3):
        b = 48 + 4 * qt
        e(f"v_max3_f32 v{4+qt}, v{4+qt}, v{b}, v{b+1}\nv_max3_f32 v{4+qt}, v{4+qt}, v{b+2}, v{b+3}")
    e("s_add_u32 s3, s3, 1\ns_cmp_lt_u32 s3, 32\ns_cbranch_scc1 L_fb")
    for qt in range(3):
        for t in max_fin(qt, 4 + qt, 7): e(t)
    e("s_barrier\ns_branch L_start")
    for t in tailcode: e(t)
    e("L_done:")
    if cfg.stamps or cfg.diag >= 0:
        e("s_waitcnt vmcnt(0)"); stamp(9)
    if cfg.stamps:
        e(f"""
        s_mov_b32 s{SD}, s{sPTR+10}
        s_mov_b32 s{SD+1}, s{sPTR+11}
        s_mov_b32 s{SD+2}, 0x100000
        s_mov_b32 s{SD+3}, 0x20000
        s_lshl_b32 s3, s2, 2
        s_add_u32 s3, s3, s{sW}
        s_lshl_b32 s3, s3, 7
        v_mov_b32_e32 v0, s3
        s_getreg_b32 s{sSTT}, hwreg(HW_REG_XCC_ID)
        s_getreg_b32 s{sSTT+1}, hwreg(HW_REG_HW_ID)
        """)
        for i in range(22):
            e(f"v_mov_b32_e32 v1, s{sCY+i}\nbuffer_store_dword v1, v0, {sr(SD,4)}, 0 offen offset:{4*i}\ns_nop 1")
    if cfg.diag >= 0:
        a, b = (cfg.diag % 100) // 10, cfg.diag % 10
        base = sCY if cfg.diag >= 100 else sRT
        e(f"s_sub_u32 s3, s{base+b}, s{base+a}")
        if cfg.diag >= 100: e("s_mul_hi_u32 s3, s3, 0x19999999")
        if cfg.diagmul != 1: e(f"s_mul_i32 s3, s3, {cfg.diagmul}")
        if cfg.diagwg >= 0: e(f"s_cmp_eq_u32 s2, {cfg.diagwg}\ns_cselect_b32 s3, s3, 0")
        e(f"s_min_u32 s3, s3, 20000\ns_add_u32 s3, s3, {cfg.diagbase}\nL_spin:\ns_memrealtime {sr(sSTT,2)}\ns_waitcnt lgkmcnt(0)\ns_sub_u32 s{sT}, s{sSTT}, s{sRT}\ns_cmp_lt_u32 s{sT}, s3\ns_cbranch_scc1 L_spin")
    e("L_exit:\ns_endpgm")

HEAD = open("standalone__mha_softmax__near_ridge.s.ref").read().split("\n")[:9]
def main():
    ap = argparse.ArgumentParser()
    ap.add_argument("-o", default="standalone__mha_softmax__near_ridge.s")
    ap.add_argument("opts", nargs="*")
    a = ap.parse_args()
    for o in a.opts:
        k, v = o.split("=")
        assert hasattr(cfg, k), k
        setattr(cfg, k, v if isinstance(getattr(cfg, k), str) else type(getattr(cfg, k))(eval(v)))
    e(f"{KN}:")
    main_stream(*prologue())
    finish()
    txt = "\n".join(HEAD) + "\n; @launch grid=(256,1,1) block=(256,1,1) lds=163840\n"
    txt += f'.amdgcn_target "amdgcn-amd-amdhsa--gfx950"\n.text\n.globl {KN}\n.p2align 8\n.type {KN},@function\n'
    txt += "\n".join(l if l.endswith(":") or l.startswith(".") else "    " + l for l in out) + "\n"
    txt += f""".section .rodata,"a"
.p2align 6
.amdhsa_kernel {KN}
  .amdhsa_next_free_vgpr 512
  .amdhsa_next_free_sgpr 102
  .amdhsa_accum_offset 256
  .amdhsa_group_segment_fixed_size 0
  .amdhsa_kernarg_size 48
  .amdhsa_user_sgpr_count 2
  .amdhsa_user_sgpr_kernarg_segment_ptr 1
  .amdhsa_system_sgpr_workgroup_id_x 1
.end_amdhsa_kernel
"""
    open(a.o, "w").write(txt)
main()
```

```python
import sys, struct, argparse

KN = "standalone__mha_softmax__near_ridge_kernel"
BIAS = 4096
QHEAD = 368 * 512
KHEAD = 512 * 512
def f2u(x): return struct.unpack("<I", struct.pack("<f", x))[0]

SQ, SK, SV, SO, SO2 = 4, 8, 12, 16, 20
sKO = 24
sVO = 28
sW, sW4, sC, sRUN, sQL, sHEAD, sSHORT = 31, 32, 33, 34, 35, 36, 37
sT = 38
sSO = 44
sLIM = 47
sFLAG = 48
sWB = 68
sPC = 50
sPTR = 52
SF = 64
sCY, sRT, sSTT, SD = 70, 80, 90, 96
def P(qt, kt): return 64 * qt + 4 * kt
ACC = 192
def acc(dt, qt): return ACC + 12 * dt + 4 * qt
vKA, vKD, vVD, vVA, vSW, vSR, vST = 240, 242, 243, 244, 245, 246, 247
vNM, vIL, vT = 248, 251, 254
vPF = 252
def Qf(qt, ks): return 32 * qt + 4 * ks
RING = 96
def fr(grp, j): return RING + 32 * (grp & 1) + 4 * j
aL, aONE, aRB = 160, 172, 176
STAGE = 131072
FLAGS = 155648

def vr(b, n): return f"v[{b}:{b+n-1}]"
def ar(b, n): return f"a[{b}:{b+n-1}]"
def sr(b, n): return f"s[{b}:{b+n-1}]"

class Cfg:
    stamps = False
    q_fl = 'nt'
    kv_fl = 'nt'
    o_fl = 'sc0_sc1'
    kspan = 5
    vpat = 5
    stime = '0:50,17:63.5'
    pfn = 0
    pf0 = 6
    pf1 = 36
    pf = '28:16,29:24,30:32,31:40'
    pf_fl = ''
    pfd_fl = ''
    sstep = 28
    lead = 8
    backlog = 18
    dstep2 = 9
    touch = True
    lim = 60
    verbose = False
    skipsoft = 0
    tsplit = 2
    order = 'kk'
    tlate = 0
    pipe = True
    pad = 6
    n0 = 2
    cdef = 0
    dummy = ''
    slowstart = 0
    qiss = '22222222222'
    pstamp = False
    nin = 8
    presc = '012'
    dropn = 99
    pstep = '0:4,9:4,10:99,32:99'
    pstepn = 8
    pre = '0,11'
    ptime = '3:2.2,7:10.2,28:44,29:48,32:56'
    cheat = 0
    trace = False
    novmwait = 99
    stg = '32,40,56'
    dtime = '0:0.38,7:0.6,8:0.88,15:1.1,16:1.38,31:2.4'
    wb = ''
    wbn = 8
    drop = ''
    diagwg = -1
    diagmul = 1
    diagbase = 5000
    diag = -1
cfg = Cfg()
out = []
tailcode = []
def e(s):
    for l in s.split("\n"):
        l = l.strip()
        if l: out.append(l)
def fl(x): return " " + x.replace("_", " ") if x else ""

TRACE_G = [7, 10, 15, 21, 27, 32, 36, 40, 43, 46, 49, 52, 55, 58, 61, 63]
def stamp_txt(i):
    if cfg.trace:
        k = {0: 0, 3: 1, 8: 18, 9: 19}.get(i)
        return "" if k is None else f"s_memrealtime {sr(sSTT+2,2)}\ns_waitcnt lgkmcnt(0)\ns_mov_b32 s{sCY+k}, s{sSTT+2}"
    if cfg.stamps or (cfg.diag >= 0 and i in (0, (cfg.diag % 100) // 10, cfg.diag % 10)):
        return f"s_memtime {sr(sSTT,2)}\ns_memrealtime {sr(sSTT+2,2)}\ns_waitcnt lgkmcnt(0)\ns_mov_b32 s{sCY+i}, s{sSTT}\ns_mov_b32 s{sRT+i}, s{sSTT+2}"
    return ""
def stamp(i): e(stamp_txt(i))

def mfma(d, a, b, c): return f"v_mfma_f32_16x16x32_bf16 {d}, {a}, {b}, {c}"
def ps(qt): return str(qt) in cfg.presc
def usec(grp, qt): return ps(qt) and grp >= 2 * cfg.n0
def sbuf(grp, qt): return 96 + 4 * grp if grp < 2 * cfg.n0 else ACC + 12 + 12 * (grp % 3) + 4 * qt
def mf_qk(S, grp, qt, ks):
    c0 = vr(ACC + 4 * qt, 4) if usec(grp, qt) else "0"
    return mfma(vr(S, 4), ar(fr(grp, ks), 4), ar(Qf(qt, ks), 4), c0 if ks == 0 else vr(S, 4))
def rd_k(grp, ks):
    t, kg = grp >> 1, grp & 1
    return f"ds_read_b128 {ar(fr(grp,ks),4)}, v{vKA+(ks&1)} offset:{(t&3)*16384 + kg*8192 + (ks>>1)*1024}"
def rd_v(grp, j, kg):
    kh = (grp >> 2) & 1; kk = 8 * kh + j
    return f"ds_read_b64_tr_b16 {ar(fr(grp,j)+2*kg,2)}, v{vVA} offset:{(kk>>2)*16384 + (4*(kk&3)+2*kg)*1024}"
def dma_txt(n, i):
    if n >= cfg.dropn: return 's_nop 0'
    if n < 16: return f"buffer_load_dwordx4 v{vKD}, {sr(SK,4)}, s{sKO+i} offen offset:{1024*i}{fl(cfg.kv_fl)} lds"
    return f"buffer_load_dwordx4 v{vVD}, {sr(SV,4)}, {'s%d' % (sVO+i-1) if i else '0'} offen offset:{1024*i}{fl(cfg.pfd_fl if str(n) + ':' in cfg.pf else cfg.kv_fl)} lds"
def dma_prep(n):
    off = (n & 7) * 16384
    r = [f"s_add_u32 m0, s{sW4}, {off}" if off else f"s_mov_b32 m0, s{sW4}"]
    if 0 < n < 16: r += [f"s_add_u32 s{SK}, s{SK}, 0x4000", f"s_addc_u32 s{SK+1}, s{SK+1}, 0"]
    elif n > 16:
        if (n & 3): r += [f"s_add_u32 s{SV}, s{SV}, 0x10000", f"s_addc_u32 s{SV+1}, s{SV+1}, 0"]
        else: r += [f"s_sub_u32 s{SV}, s{SV}, {3*65536-128}", f"s_subb_u32 s{SV+1}, s{SV+1}, 0"]
    return r
def max_seq(qt):
    t, u = vT, vT + 1; h = 4 * cfg.n0
    r = []
    for d, b in ((t, 96), (u, 96 + h)):
        c = [f"v_max3_f32 v{d}, v{b}, v{b+1}, v{b+2}"] + [f"v_max3_f32 v{d}, v{d}, v{b+i}, v{b+i+1}" for i in range(3, h - 1, 2)]
        r.append(c)
    r = [x for p in zip(*r) for x in p]
    return r + [f"v_max3_f32 v{t}, v{t}, v{96+h-1}, v{96+2*h-1}", f"v_max_f32_e32 v{t}, v{t}, v{u}"] + max_fin(qt, t, u)
def l_txt(qt, kt): return mfma(ar(aL + 4 * qt, 4), ar(aONE, 4), vr(P(qt, kt), 4), "0" if kt == 0 else ar(aL + 4 * qt, 4))
def max_fin(qt, t, u):
    return [f"v_mov_b32_e32 v{u}, v{t}", "s_nop 1", f"v_permlane32_swap_b32_e32 v{t}, v{u}", f"v_max_f32_e32 v{t}, v{t}, v{u}",
            f"v_mov_b32_e32 v{u}, v{t}", "s_nop 1", f"v_permlane16_swap_b32_e32 v{t}, v{u}", f"v_max_f32_e32 v{t}, v{t}, v{u}",
            ] + ([f"v_min_f32_e64 v{vNM+qt}, v{vNM+qt}, -v{t}"] if ps(qt) else
                 [f"v_mul_f32_e64 v{t}, v{t}, -s{sC}", f"v_min_f32_e32 v{vNM+qt}, v{vNM+qt}, v{t}"])
def cinit(qt): return [f"v_mov_b32_e32 v{ACC+4*qt+i}, v{vNM+qt}" for i in range(4)] if ps(qt) else []
def fma1(S, i, qt):
    return f"v_add_f32_e32 v{S+i}, v{S+i}, v{vNM+qt}" if ps(qt) else f"v_fma_f32 v{S+i}, v{S+i}, s{sC}, v{vNM+qt}"
def exp1(S, i): return f"v_exp_f32_e32 v{S+i}, v{S+i}"
def cvt1(d, a): return f"v_cvt_pk_bf16_f32 v{d}, v{a}, v{a+1}"

class It:
    def __init__(s, text, kind, early=0, deps=(), prio=0, dead=None, ctr=None, mf=None):
        s.text, s.kind, s.early, s.deps, s.prio, s.dead, s.ctr = text, kind, early, list(deps), prio, dead, ctr
        s.gap = None; s.mf = mf
        s.cost = {"valu": 1, "exp": 2, "lds": 1, "full": 2, "scalar": 0}[kind]
class Wait(It):
    def __init__(s, lgkm=None, vm=None, **kw):
        It.__init__(s, None, "scalar", **kw); s.tg = {"vm": vm, "lgkm": lgkm}

class Stream:
    def __init__(s):
        s.mf = []; s.items = []; s.gaps = {}
        s.issued = {"lgkm": [], "vm": []}
    def g(s, i): return s.gaps.setdefault(i, dict(sh=[], mem=[], valu=[], bar=False, raw=[]))
    def add(s, it): s.items.append(it); return it
    def fix(s, it, gap):
        it.gap = gap
        s.g(gap)["sh" if it.kind == "scalar" else "mem" if it.kind in ("lds", "full") else "valu"].append(it)
        return it
    def used(s, i):
        G = s.g(i); return sum(x.cost for x in G["mem"] + G["valu"]) + max(0, len(G["sh"]) - 1)
    def run(s, ngaps_extra=400):
        pend = sorted(s.items, key=lambda x: x.prio)
        n = len(s.mf)
        def dist(m, i):
            c = min(i, n - 1) - m
            for k in range(m, i + 1):
                G = s.g(k); c += len(G["sh"]) + len(G["mem"]) + len(G["valu"]) + (8 if G["raw"] and k < i else 0)
            return c
        def ok(x, i):
            return x.early <= i and all(d.gap is not None and d.gap + m <= i for d, m in x.deps) and (x.mf is None or (i > x.mf and dist(x.mf, i) >= 8))
        i = 0
        while pend:
            tailmode = i >= n - 1
            G = s.g(i)
            def take(x): pend.remove(x); s.fix(x, i); assert x.dead is None or i <= x.dead, (x.text, i, x.dead)
            if True:
                placed_full = False
                if s.used(i) == 0 and not G["bar"]:
                    for x in pend:
                        if x.kind == "full" and ok(x, i) and (not G["sh"] or x.text.startswith("ds_")):
                            take(x); placed_full = True; break
                if not G["sh"] and not (placed_full and not G["mem"][0].text.startswith("ds_")):
                    for x in pend:
                        if x.kind == "scalar" and ok(x, i): take(x); break
                if not placed_full:
                    prevx = any(y.text.startswith("ds_write") for y in s.g(i - 1)["mem"])
                    for x in list(pend):
                        if x.kind == "lds" and ok(x, i) and s.used(i) < 2 and not prevx and not G["bar"]: take(x)
                    while True:
                        back = sum(x.cost for x in pend if x.kind in ("valu", "exp") and x.early <= i)
                        budget = 1 if G["bar"] else 3 if back > cfg.backlog else 2
                        free = budget - s.used(i)
                        el = [x for x in pend if x.kind in ("valu", "exp") and ok(x, i) and x.cost <= free]
                        if not el: break
                        ex = [x for x in el if x.kind == "exp"]
                        take(ex[0] if ex else el[0])
            i += 1
            assert i < n + ngaps_extra, [x.text for x in pend][:5]
        s.last = max(s.gaps)
    def emit1(s, x):
        if isinstance(x, Wait):
            w = []
            for c, t in x.tg.items():
                if t is None: continue
                q = s.issued[c]
                w.append(f"{c}cnt({min(len(q) - 1 - q.index(t), (0 if getattr(x, 'zero', 0) else 15) if c == 'lgkm' else 63)})")
            e("s_waitcnt " + " ".join(w))
        else:
            e("s_nop 0" if cfg.drop and x.text.startswith(tuple(cfg.drop.split(","))) else x.text)
            if x.ctr: s.issued[x.ctr].append(x)
    def emit(s):
        over = 0; line = []
        for i in range(s.last + 1):
            if i < len(s.mf): e(s.mf[i])
            G = s.g(i)
            for x in G["sh"] + G["mem"] + G["valu"]: s.emit1(x)
            for t in G["raw"]: e(t)
            if "post" in G: e(G["post"])
            if i < cfg.slowstart and i % 2 == 0: e("s_nop 3")
            u = s.used(i); over += max(0, u - 2) if i < len(s.mf) else 0
            line.append(("B" if G["bar"] else "." if G["sh"] else "") + "".join({"lds": "r", "full": x.text[:8] == "ds_write" and "x" or x.text[:8] == "buffer_l" and "D" or x.text[:3] == "s_b" and "B" or "S", "valu": "a", "exp": "E"}[x.kind] for x in G["mem"] + G["valu"]))
        if cfg.verbose:
            for k in range(0, len(line), 25): print(k, "|".join(line[k:k + 25]), file=sys.stderr)
        print(f"mfma {len(s.mf)} gaps {s.last+1} overflow slots {over}", file=sys.stderr)

def main_stream(pre_vm, lastdma):
    S = Stream()
    S.issued["vm"] = list(pre_vm)
    npre = len(cfg.pre.split(',')) + cfg.n0 - 1
    gstart = {}
    chain_end = {}
    pdone = {}
    lpos = {}
    def l_mfma(qt, kt):
        lpos[(qt, kt)] = len(S.mf)
        S.mf.append(l_txt(qt, kt))
    G0 = 2 * cfg.n0
    for grp in range(G0, 32):
        gstart[grp] = len(S.mf)
        for qt in range(3):
            for ks in range(8): S.mf.append(mf_qk(sbuf(grp, qt), grp, qt, ks))
            chain_end[(grp, qt)] = len(S.mf) - 1
            if grp & 1 and grp > G0 + 1: l_mfma(qt, (grp >> 1) - 1)
            if grp == G0 + 2 and qt < cfg.n0: l_mfma(2, qt)
    for g2 in range(32):
        grp = 32 + g2; ds, kh, dt = g2 >> 3, (g2 >> 2) & 1, g2 & 3
        gstart[grp] = len(S.mf)
        for qt in range(3):
            for j in range(8):
                kk = 8 * kh + j; a = acc(dt, qt)
                S.mf.append(mfma(vr(a, 4), ar(fr(grp, j), 4), vr(P(qt, kk), 4), "0" if kk == 0 else vr(a, 4)))
            chain_end[(grp, qt)] = len(S.mf) - 1
            if g2 == 1: l_mfma(qt, 15)
    gstart[64] = len(S.mf)
    bars = []
    for t in range(cfg.n0 + 1, 16): bars.append((gstart[2 * t - 1], t, t - 1))
    bars.append((gstart[31], 17, 15))
    for u in range(1, 8): bars.append((gstart[32 + 4 * u - 1], 17 + 2 * u, 15 + 2 * u))
    baritems = []; endwait = {}
    for gp, pub, freed in bars:
        w = Wait(); S.fix(w, gp - 1); endwait[gp] = w
        b = It("s_barrier", "scalar"); S.fix(b, gp); S.g(gp)["bar"] = True
        baritems.append((w, b, pub, freed))
    bargaps = {b[0] for b in bars}
    for grp in range(G0 + 1, 64):
        g0, g1 = gstart[grp - 1], gstart[grp]
        first = g0 + (1 if g0 in bargaps else 0)
        if grp < 32:
            txt = [rd_k(grp, ks) for ks in range(8)]
            if grp == 2: pos = [first + k // 2 for k in range(8)]
            else: pos = [first + (k * cfg.kspan) // 2 for k in range(8)]
            if grp % 8 == 0:
                for r in (0, 1): S.fix(It(f"v_xor_b32_e32 v{vKA+r}, 0x10000, v{vKA+r}", "valu"), g0 - 2 + r)
        else:
            txt = [rd_v(grp, j, kg) for j in range(8) for kg in (0, 1)]
            offs = [[0, 0, 1, 2, 5, 6, 6, 7, 10, 11, 11, 12, 15, 16, 16, 17],
                    [0, 0, 1, 2, 2, 4, 5, 5, 6, 8, 9, 9, 10, 12, 13, 13],
                    [0, 1, 2, 3, 4, 5, 6, 7, 8, 9, 10, 11, 12, 13, 14, 15],
                    [0, 0, 1, 1, 3, 3, 4, 4, 6, 6, 7, 7, 9, 9, 10, 10],
                    [0, 1, 2, 3, 4, 7, 8, 9, 10, 11, 12, 15, 16, 17, 18, 19],
                    [0, 1, 2, 3, 5, 6, 7, 8, 10, 11, 12, 13, 15, 16, 17, 18],
                    [0, 1, 3, 4, 6, 7, 9, 10, 12, 13, 15, 16, 18, 19, 21, 22], [0, 0, 3, 3, 6, 6, 9, 9, 12, 12, 15, 15, 18, 18, 21, 21],
                    [0, 1, 2, 4, 5, 6, 8, 9, 10, 12, 13, 14, 16, 17, 18, 20]][cfg.vpat]
            pos = [g0 + 1 + o for o in offs]
            if grp > 32:
                x = (((grp ^ (grp - 1)) & 3) << 5) | (0x10000 if (grp & 7) == 0 else 0)
                S.fix(It(f"v_xor_b32_e32 v{vVA}, {hex(x)}, v{vVA}", "valu"), g0 if cfg.vpat >= 6 else g0 - 1)
        its = [S.fix(It(t, "lds", ctr="lgkm"), p) for t, p in zip(txt, pos)]
        if grp == 2:
            S.fix(Wait(its[3]), g1 - 1); S.fix(Wait(its[-1]), g1 + 2)
        elif grp > 32 and cfg.vpat >= 6:
            if g1 in endwait: endwait[g1].tg["lgkm"] = its[11]
            else: endwait[g1] = S.fix(Wait(its[11]), g1 - 1)
            S.fix(Wait(its[-1]), g1 + 4)
        elif g1 in endwait: endwait[g1].tg["lgkm"] = its[-1]
        else: endwait[g1] = S.fix(Wait(its[-1]), g1 - 1)
        if cfg.trace and grp in TRACE_G:
            S.fix(It(f"s_memrealtime {sr(sSTT+2,2)}", "scalar"), g1 - 5); endwait[g1].zero = True
            S.fix(It(f"s_mov_b32 s{sCY+2+TRACE_G.index(grp)}, s{sSTT+2}", "scalar"), g1 + 1)
    def piecewise(spec, k):
        pts = [tuple(map(float, x.split(":"))) for x in spec.split(",")]
        for (k0, p0), (k1, p1) in zip(pts, pts[1:]):
            if k0 <= k <= k1: return int(gstart[40] + 192 * (p0 + (p1 - p0) * (k - k0) / (k1 - k0) - 1))
    def gpos(p):
        g = int(p); return int(gstart[g] + (p - g) * (gstart[g + 1] - gstart[g]))
    def pw(spec, k):
        pts = [tuple(map(float, x.split(":"))) for x in spec.split(",")]
        for (k0, p0), (k1, p1) in zip(pts, pts[1:]):
            if k0 <= k <= k1: return p0 + (p1 - p0) * (k - k0) / (k1 - k0)
    prev = None
    for n in range(npre + 1, 32):
        need = max(n - 8 - (cfg.cheat if n >= 24 else 0), 0)
        gate = next(b for (w, b, pub, freed) in baritems if freed >= need)
        if n <= 7 + cfg.n0: gate = It('', 'scalar'); gate.gap = -1
        tgt = max(gpos(pw(cfg.ptime, n)), gate.gap + 1)
        step = max(2, min(int(pw(cfg.pstep, n)), (gpos(pw(cfg.ptime, n + 1)) - tgt) // 4))
        for t in dma_prep(n):
            prev = S.add(It(t, "scalar", early=tgt - 6, deps=[(prev, 1)] if prev else [], prio=tgt - 6))
        for i in range(4):
            prev = S.add(It(dma_txt(n, i), "full", early=tgt + i * step, deps=[(prev, 1), (gate, 1)], prio=tgt + i * step - 30, ctr="vm"))
        lastdma[n] = prev
    for (w, b, pub, freed) in baritems:
        if pub < cfg.novmwait: w.tg["vm"] = lastdma[pub]
        if pub > npre: lastdma[pub].dead = b.gap - 2
    if cfg.pf:
        pts = [x.split(":") for x in cfg.pf.split(",")]
        vP = vNM if cfg.presc == '012' else vKD
        pfp = S.add(It(f"v_accvgpr_read_b32 v{vP}, a251", "valu", 0, prio=0) if vP == vNM else
                    It(f"v_accvgpr_read_b32 v{vP}, a251", "valu", gstart[28], [(lastdma[15], 1)], prio=gstart[28]))
        for n, pos in pts:
            n = int(n) - 16; g = gpos(float(pos))
            x = S.add(It(f"s_mov_b32 s{sT}, {(n & 3) * 65536 + (n >> 2) * 128}", "scalar", g - 4, [(pfp, 1)], prio=g - 4))
            pfp = S.add(It(f"buffer_load_dword a250, v{vP}, {sr(SF,4)}, s{sT} offen{fl(cfg.pf_fl)}", "full", g, [(x, 1)], prio=g, ctr="vm"))
    def soft(grp, qt, extra=()):
        Sb = sbuf(grp, qt); e0 = chain_end.get((grp, qt), -1) + 1; kt, kg = grp >> 1, grp & 1
        reuse = 9999 if grp < G0 else gstart[grp + 3] + 8 * qt - 1 if grp + 3 < 32 else gstart[33 + grp % 3] + 8 * qt - 1
        if grp < G0:
            x = [S.add(It(exp1(Sb, i), "exp", 0, prio=grp - 9 + 0.1 * i)) for i in range(4)]
        elif usec(grp, qt):
            x = [S.add(It(exp1(Sb, i), "exp", e0, prio=e0 + 0.1 * i, mf=e0 - 1)) for i in range(4)]
        else:
            f = [S.add(It(fma1(Sb, i, qt), "valu", e0, extra, prio=e0 + 0.1 * i, mf=e0 - 1)) for i in range(4)]
            x = [S.add(It(exp1(Sb, i), "exp", e0, [(f[i], 0)], prio=e0 + 0.1 * i)) for i in range(4)]
        dead = min(reuse, lpos[(qt, kt)] - 2)
        for h in (0, 1):
            S.add(It(cvt1(P(qt, kt) + 2 * kg + h, Sb + 2 * h), "valu", e0, [(x[2 * h], 1), (x[2 * h + 1], 1)], prio=e0 + 6 + h, dead=dead))
    for grp in range(G0 - 2 * cfg.cdef, G0): soft(grp, 2)
    for grp in range(G0 + cfg.skipsoft, 32):
        for qt in range(3): soft(grp, qt)
    e0 = lpos[(2, 15)] + 1
    rds = [S.add(It(f"v_accvgpr_read_b32 v{vIL+qt}, a{aL+4*qt}", "valu", e0, prio=e0, mf=e0 - 1)) for qt in range(3)]
    mx = S.add(It(f"v_max3_f32 v{vT}, v{vIL}, v{vIL+1}, v{vIL+2}", "valu", e0, [(r, 0) for r in rds], prio=e0 + 1))
    rc = [S.add(It(f"v_rcp_f32_e32 v{vIL+qt}, v{vIL+qt}", "exp", e0, [(mx, 0)], prio=e0 + 2)) for qt in range(3)]
    cm = S.add(It(f"v_cmp_nlt_f32_e64 {sr(sFLAG,2)}, v{vT}, s{sLIM}", "valu", e0, [(mx, 0)], prio=e0 + 3))
    c1 = S.add(It(f"v_mov_b32_e32 v{vT}, s{sFLAG}", "valu", e0, [(cm, 2)], prio=e0 + 4))
    c2 = S.add(It(f"v_or_b32_e32 v{vT}, s{sFLAG+1}, v{vT}", "valu", e0, [(c1, 0)], prio=e0 + 5))
    c3 = S.add(It(f"v_mov_b32_e32 v{vT+1}, s{sQL}", "valu", e0, prio=e0 + 5))
    fw = S.add(It(f"ds_write_b32 v{vT+1}, v{vT}", "full", e0, [(c2, 1), (c3, 1)], prio=e0 + 6, ctr="lgkm", dead=gstart[38]))
    def starget(k): return gpos(pw(cfg.stime, k)) if k < 18 else 0
    prevw = None; prevst = [None] * 6; prevrb = []; laststore = None
    for ds in range(4):
        for dt in range(4):
            grp = 32 + 8 * ds + 4 + dt
            xo = None
            if ds or dt:
                x = ((dt ^ (dt - 1)) & 3) << 5
                xo = S.add(It(f"v_xor_b32_e32 v{vSW}, {hex(x)}, v{vSW}", "valu", gstart[grp], [(prevw, 1)], prio=gstart[grp]))
            for qt in range(3):
                a = acc(dt, qt); e0 = chain_end[(grp, qt)] + 1
                last = ds == 3 and dt == 3 and qt == 2
                m = [S.add(It(f"v_mul_f32_e32 v{a+i}, v{a+i}, v{vIL+qt}", "valu", e0, [(rc[qt], 1)], prio=e0 + 0.1 * i, mf=e0 - 1)) for i in range(4)]
                c0 = S.add(It(cvt1(a, a), "valu", e0, [(m[0], 0), (m[1], 0)], prio=e0 + 1))
                c1 = S.add(It(cvt1(a + 1, a + 2), "valu", e0, [(m[2], 0), (m[3], 0), (c0, 0)], prio=e0 + 1.1))
                dead = gstart[grp + 4] + 8 * qt - 1 if ds < 3 else None
                prevw = S.add(It(f"ds_write_b64 v{vSW}, {vr(a,2)} offset:{qt*2048}", "full", e0, [(c1, 1)] + ([(xo, 1)] if xo else []) + ([(prevw, 1)] if prevw else []) + [(r, 1) for r in prevrb[:6 * ds]],
                                 prio=e0 - 50, ctr="lgkm", dead=dead))
                if dt == 3:
                    for h in (0, 1):
                        rb = 2 * qt + h
                        r = S.add(It(f"ds_read_b128 {ar(aRB+24*(ds%3)+4*rb,4)}, v{vSR} offset:{rb*1024}", "lds", e0, [(prevw, 1)] + ([(prevst[rb], 2)] if ds == 3 else []), prio=e0, ctr="lgkm"))
                        prevrb.append(r)
                        w = S.add(Wait(r, deps=[(r, 1 if last else 5)], prio=e0))
                        srd, so = (SO, rb) if qt < 2 else (SO2, h)
                        st = S.add(It(f"buffer_store_dwordx4 {ar(aRB+24*(ds%3)+4*rb,4)}, v{vST}, {sr(srd,4)}, {'s%d' % (sSO+so-1) if so else '0'} offen offset:{ds*128}{fl(cfg.o_fl.split(',')[ds % len(cfg.o_fl.split(','))])}",
                                              "full", max(e0, starget(6 * ds + rb)), [(w, 1)] + ([(laststore, cfg.sstep if ds < 3 and not cfg.stime else 1)] if laststore else []), prio=e0 - 20, ctr="vm"))
                        laststore = st
                        if ds == 0: prevst[rb] = st
    S.g(len(S.mf) - 1)["raw"].append("s_nop 7")
    if cfg.wb:
        for k, p in enumerate(map(float, cfg.wb.split(","))):
            g = int(gstart[40] + 192 * (p - 1))
            S.g(g)["post"] = f"s_cmp_eq_u32 s{sWB}, {k}\ns_cbranch_scc1 L_wb{k}\nL_wbr{k}:"
            tailcode.append(f"L_wb{k}:\nbuffer_wbl2 sc1\ns_branch L_wbr{k}")
    for i, g in zip((5, 6, 7), map(int, cfg.stg.split(','))):
        t = stamp_txt(i)
        if t and not cfg.pstamp: S.g(gstart[g] - 1)["raw"].append(t)
    S.run(); S.emit()

def prologue():
    stamp(0)
    e(f"""
    s_cmp_ge_u32 s2, 256
    s_cbranch_scc1 L_exit
    s_load_dwordx8 {sr(sPTR,8)}, s[0:1], 0
    v_lshrrev_b32_e32 v1, 6, v0
    s_mov_b32 s{sRUN}, 0
    v_readfirstlane_b32 s{sW}, v1
    """)
    if cfg.stamps: e(f"s_load_dwordx4 {sr(sPTR+8,4)}, s[0:1], 32")
    touch_ld = [f"global_load_dword v4, v2, {sr(sPC,2)}", f"global_load_dword v5, v3, {sr(sPC,2)}"]
    touch_adr = f"""
        s_getpc_b64 {sr(sPC,2)}
        L_pc:
        v_lshlrev_b32_e32 v2, 7, v0
        v_add_u32_e32 v3, 0x8000, v2
        v_min_u32_e32 v2, L_exit-L_pc, v2
        v_min_u32_e32 v3, L_exit-L_pc, v3
        """
    if cfg.tsplit:
        touch_ld = touch_ld[:1]
        touch_adr = f"""
        s_getpc_b64 {sr(sPC,2)}
        L_pc:
        s_bfe_u32 s3, s2, {hex(cfg.tsplit << 16 | 3)}
        s_lshl_b32 s3, s3, {15 - cfg.tsplit}
        s_add_u32 s3, s3, L_exit-L_pc-32640
        v_lshrrev_b32_e32 v2, {cfg.tsplit}, v0
        v_lshl_add_u32 v2, v2, 7, s3
        """
    if cfg.touch and not cfg.tlate:
        e(touch_adr)
        for t in touch_ld: e(t)
    for qt in range(3): e(f"v_mov_b32_e32 v{vNM+qt}, 0x7f800000")
    L = 8
    e("L_start:")
    e(f"""
    v_mbcnt_lo_u32_b32 v{L}, -1, 0
    v_mbcnt_hi_u32_b32 v{L}, -1, v{L}
    s_lshr_b32 s{sHEAD}, s2, 4
    s_lshl_b32 s{sHEAD}, s{sHEAD}, 3
    s_and_b32 s3, s2, 7
    s_add_u32 s{sHEAD}, s{sHEAD}, s3
    s_bfe_u32 s3, s2, 0x10003
    s_lshl_b32 s3, s3, 2
    s_add_u32 s3, s3, s{sW}
    s_cmp_eq_u32 s3, 7
    s_cselect_b32 s{sSHORT}, 0, -1
    s_cselect_b32 s{sT+2}, 0xf149f2ca, -1
    s_mul_i32 s3, s3, 24576
    s_mul_i32 s{sT}, s{sHEAD}, {QHEAD}
    s_add_u32 s{sT}, s{sT}, s3
    s_lshl_b32 s{sT+1}, s{sHEAD}, 18
    s_lshl_b32 s{sW4}, s{sW}, 12
    v_lshrrev_b32_e32 v9, 3, v{L}
    v_and_b32_e32 v10, 7, v{L}
    v_lshrrev_b32_e32 v11, 1, v9
    v_xor_b32_e32 v12, v10, v11
    v_lshlrev_b32_e32 v12, 4, v12
    v_lshl_add_u32 v12, v9, 9, v12
    v_xor_b32_e32 v13, 0x1040, v12
    s_and_b32 s3, s{sW}, 1
    s_lshl_b32 s3, s3, 6
    s_or_b32 s3, s3, s{sW4}
    v_xor_b32_e32 v{vKD}, s3, v12
    s_lshl_b32 s{sQL}, s{sW}, 13
    s_add_u32 s{sQL}, s{sQL}, 0x10000
    """)
    for lc in range(4): e(f"s_mov_b32 s{sKO+lc}, {BIAS - 896*lc}")
    e(f"""
    s_mov_b32 s{SK+2}, {BIAS + 16384}
    s_mov_b32 s{SK+3}, 0x20000
    s_mov_b32 s{SQ+2}, {BIAS + 8192}
    s_mov_b32 s{SQ+3}, 0x20000
    s_mov_b32 m0, s{sW4}
    s_waitcnt lgkmcnt(0)
    """)
    stamp(1)
    e(f"""
    s_add_u32 s{SK}, s{sPTR+2}, s{sT+1}
    s_addc_u32 s{SK+1}, s{sPTR+3}, 0
    s_sub_u32 s{SK}, s{SK}, {BIAS}
    s_subb_u32 s{SK+1}, s{SK+1}, 0
    """)
    vm = []
    def vmem(t): e(t); vm.append(It(t, "full"))
    e(f"""
    s_add_u32 s{SQ}, s{sPTR}, s{sT}
    s_addc_u32 s{SQ+1}, s{sPTR+1}, 0
    s_sub_u32 s{SQ}, s{SQ}, {BIAS}
    s_subb_u32 s{SQ+1}, s{SQ+1}, 0
    """)
    rest = f"""
    s_add_u32 s{SV}, s{sPTR+4}, s{sT+1}
    s_addc_u32 s{SV+1}, s{sPTR+5}, 0
    s_mov_b32 s{SV+2}, 65152
    s_mov_b32 s{SV+3}, 0x20000
    s_add_u32 s{SO}, s{sPTR+6}, s{sT}
    s_addc_u32 s{SO+1}, s{sPTR+7}, 0
    s_mov_b32 s{SO+2}, 16384
    s_mov_b32 s{SO+3}, 0x20000
    s_add_u32 s{SO2}, s{SO}, 16384
    s_addc_u32 s{SO2+1}, s{SO+1}, 0
    s_and_b32 s{SO2+2}, s{sSHORT}, 8192
    s_mov_b32 s{SO2+3}, 0x20000
    s_mov_b32 s{SF}, s{SV}
    s_mov_b32 s{SF+1}, s{SV+1}
    s_mov_b32 s{SF+2}, {KHEAD}
    s_mov_b32 s{SF+3}, 0x20000
    s_bfe_u32 s3, s2, 0x10003
    s_lshl_b32 s3, s3, 2
    s_add_u32 s3, s3, s{sW}
    s_lshl_b32 s3, s3, 15
    s_lshr_b32 s3, s3, 2
    v_lshrrev_b32_e32 v14, 2, v{L}
    v_lshl_add_u32 v14, v14, 9, s3
    v_and_b32_e32 v15, 3, v{L}
    v_lshl_add_u32 v14, v15, 2, v14
    v_accvgpr_write_b32 a251, v14
    s_lshr_b32 s{sWB}, s2, 3
    s_cmp_eq_u32 s{sW}, 0
    s_cselect_b32 s{sWB}, s{sWB}, -1
    s_mov_b32 s{sVO}, 3072
    s_mov_b32 s{sVO+1}, 6144
    s_mov_b32 s{sVO+2}, 9216
    s_mov_b32 s{sSO}, 4096
    s_mov_b32 s{sSO+1}, 8192
    s_mov_b32 s{sSO+2}, 12288
    s_mov_b32 s{sC}, {f2u(1.4426950408889634 / 16)}
    s_mov_b32 s{sLIM}, {f2u(2.0 ** cfg.lim)}
    v_lshlrev_b32_e32 v14, 1, v11
    v_xor_b32_e32 v14, v14, v10
    v_lshlrev_b32_e32 v14, 4, v14
    v_lshl_add_u32 v14, v9, 9, v14
    s_lshl_b32 s3, s{sW}, 14
    v_add_u32_e32 v{vVD}, s3, v14
    v_lshlrev_b32_e32 v14, 4, v10
    v_lshl_add_u32 v{vST}, v9, 9, v14
    s_mul_i32 s3, s{sW}, 6144
    s_add_u32 s3, s3, {STAGE}
    v_xor_b32_e32 v14, v9, v10
    v_lshlrev_b32_e32 v14, 4, v14
    v_lshl_add_u32 v14, v9, 7, v14
    v_add_u32_e32 v{vSR}, s3, v14
    v_lshrrev_b32_e32 v15, 5, v{L}
    v_xor_b32_e32 v14, v15, v10
    v_lshlrev_b32_e32 v14, 4, v14
    v_and_b32_e32 v16, 15, v{L}
    v_lshl_add_u32 v14, v16, 7, v14
    v_bfe_u32 v17, v{L}, 4, 1
    v_lshl_add_u32 v14, v17, 3, v14
    v_add_u32_e32 v{vSW}, s3, v14
    v_bfe_u32 v14, v{L}, 2, 3
    v_lshlrev_b32_e32 v18, 10, v15
    v_lshl_add_u32 v18, v14, 7, v18
    v_lshrrev_b32_e32 v14, 1, v14
    v_lshl_add_u32 v18, v14, 5, v18
    v_and_b32_e32 v14, 3, v{L}
    v_lshl_add_u32 v{vVA}, v14, 3, v18
    v_bfe_u32 v14, v{L}, 3, 1
    v_lshlrev_b32_e32 v18, 12, v14
    v_lshl_add_u32 v18, v10, 7, v18
    v_bfe_u32 v14, v{L}, 1, 3
    v_lshrrev_b32_e32 v19, 4, v{L}
    v_xor_b32_e32 v14, v14, v19
    v_lshl_add_u32 v{vKA}, v14, 4, v18
    v_xor_b32_e32 v{vKA+1}, 64, v{vKA}
    v_add_u32_e32 v20, s{sQL}, v{vKA}
    v_add_u32_e32 v21, s{sQL}, v{vKA+1}
    v_mov_b32_e32 v22, s{sC}
    v_min_f32_e32 v{vNM+2}, s{sT+2}, v{vNM+2}
    v_mov_b32_e32 v14, 0x3f803f80
    v_accvgpr_write_b32 a{aONE}, v14
    v_accvgpr_write_b32 a{aONE+1}, v14
    v_accvgpr_write_b32 a{aONE+2}, v14
    v_accvgpr_write_b32 a{aONE+3}, v14
    """
    mark = {}
    def pst(i):
        if cfg.pstamp: stamp(i)
    def q_loads(qt):
        r = []
        order = [(par, lc) for lc in range(4) for par in ((0, 1) if lc % 2 == 0 else (1, 0))]
        last = None
        for k, (par, lc) in enumerate(order):
            pre = []
            if par != last or (qt == 0 and k % 2 == 0): pre.append(f"s_add_u32 m0, s{sQL}, {qt*32768+par*4096}")
            last = par
            if k == 0 and qt: pre += [f"s_add_u32 s{SQ}, s{SQ}, 8192", f"s_addc_u32 s{SQ+1}, s{SQ+1}, 0"]
            if k == 0 and qt == 2: pre.append(f"s_and_b32 s{SQ+2}, s{SQ+2}, s{sSHORT}")
            if len(pre) == 1: pre.append("s_nop 0")
            r.append((pre, f"buffer_load_dwordx4 v{12+par}, {sr(SQ,4)}, s{sKO+lc} offen offset:{1024*lc}{fl(cfg.q_fl)} lds", ("q", qt, k)))
        return r
    def k_loads(n): return [((dma_prep(n) + ['s_nop 0'] * (n == 0)) if i == 0 else [], dma_txt(n, i), ("k", n, i)) for i in range(4)]
    def issue(x):
        for t in x[0]: e(t)
        vmem(x[1]); mark[x[2]] = len(vm)
    def wait_vm(key): e(f"s_waitcnt vmcnt({len(vm) - mark[key]})")
    def sprinkle(body, loads, lo=0.0, hi=1.0):
        pos = [int(len(body) * (lo + (hi - lo) * k / max(1, len(loads) - 1))) for k in range(len(loads))]
        for i, t in enumerate(body + [""]):
            while pos and pos[0] <= i: pos.pop(0); issue(loads.pop(0))
            e(t)
    def q_read(qt, ks): return f"ds_read_b128 {vr(24+4*ks,4) if ps(qt) else ar(Qf(qt,ks),4)}, v{20+(ks&1)} offset:{(ks>>1)*1024}"
    def q_scale(qt, ks):
        r = []
        if not ps(qt): return r
        for j in range(4):
            r += [f"v_lshlrev_b32_e32 v{56+2*j}, 16, v{24+4*ks+j}", f"v_and_b32_e32 v{57+2*j}, 0xffff0000, v{24+4*ks+j}"]
        r += [f"v_pk_mul_f32 {vr(56+2*j,2)}, {vr(56+2*j,2)}, {vr(22,2)} op_sel_hi:[1,0]" for j in range(4)]
        r += [cvt1(56 + 2 * j, 56 + 2 * j) for j in range(4)]
        r += [f"v_accvgpr_write_b32 a{Qf(qt,ks)+j}, v{56+2*j}" for j in range(4)]
        return r
    G0 = 2 * cfg.n0
    def soft0(qt, defer=0):
        r = [fma1(96, i, qt) for i in range(4 * G0)] + [exp1(96, i) for i in range(4 * (G0 - defer))]
        return r + [cvt1(P(qt, grp >> 1) + 2 * (grp & 1) + h, sbuf(grp, qt) + 2 * h) for grp in range(G0 - defer) for h in (0, 1)]
    def k_pre(lc):
        for grp in range(G0):
            for k in (0, 1):
                ks = 2 * lc + k
                e(f"ds_read_b128 {ar(RING + 8*grp + 4*k, 4)}, v{vKA+k} offset:{(grp>>1)*16384 + (grp&1)*8192 + lc*1024}")
    def mf_pre(i):
        qt, lc = i >> 2, i & 3
        for grp in range(G0):
            for k in (0, 1):
                b = vr(sbuf(grp, qt), 4)
                e(mfma(b, ar(RING + 8 * grp + 4 * k, 4), ar(Qf(qt, 2 * lc + k), 4), "0" if lc == 0 and k == 0 else b))
    ql = q_loads(0) + q_loads(1) + q_loads(2)
    todo = []; nk = nq = 0
    assert cfg.order.count('k') == cfg.n0 and cfg.order[-1] == 'k'
    for c in cfg.order + 'q' * (12 - cfg.order.count('q')):
        if c == 'k': todo += k_loads(nk); nk += 1
        else: todo += ql[2 * nq:2 * nq + 2]; nq += 1
    ib = cfg.order.count('q')
    assert ib <= 3
    kat = dict(enumerate(map(int, cfg.pre.split(',')), cfg.n0))
    kq = {n: k_loads(n) for n in kat}
    for _ in range(cfg.nin): issue(todo.pop(0))
    if cfg.touch and cfg.tlate:
        e(f"s_lshl_b32 s3, s{sW}, 6\nv_add_u32_e32 v0, s3, v{L}"); e(touch_adr)
        for t in touch_ld: vmem(t)
    e(rest)
    def k_landed(n):
        while ("k", n, 3) not in mark: issue(todo.pop(0))
        wait_vm(("k", n, 3))
        if n == cfg.n0 - 1: e("s_barrier"); k_pre(0)
        for _ in range(4): issue(todo.pop(0))
    seq = iter(cfg.order); nk = 0
    stamp(2)
    for i in range(12):
        qt, lc = i >> 2, i & 3
        for c in seq:
            if c == 'q': break
            k_landed(nk); nk += 1
        if i == ib:
            for j in range(ib - (1 if cfg.pipe else 0)):
                e("s_waitcnt lgkmcnt(0)"); mf_pre(j); k_pre(j + 1)
            if ib: e("s_waitcnt lgkmcnt(0)")
        while ("q", qt, 2 * lc + 1) not in mark: issue(todo.pop(0))
        wait_vm(("q", qt, 2 * lc + 1))
        if i == 11: stamp(3)
        if i in (0, 4, 8): pst(5 + i // 4)
        e(q_read(qt, 2 * lc)); e(q_read(qt, 2 * lc + 1))
        if i == 8 and max(kat) > 3: e("s_barrier")
        for _ in range(int(cfg.qiss[i]) if i < 11 else 9):
            for n in kq:
                if not todo and kq[n] and kat[n] <= i and (n < 4 or i >= 8): todo, kq[n] = kq[n], []
            if todo: issue(todo.pop(0))
        if i == 11:
            for n in kq:
                for x in kq[n]: issue(x)
        if lc == 3 and qt < 2: e("v_add_u32_e32 v20, 0x8000, v20\nv_add_u32_e32 v21, 0x8000, v21")
        nr = 0
        if i >= ib and lc > 0 and cfg.pipe:
            mf_pre(i - 1); k_pre(lc); nr = 2 * G0
        for k in (0, 1):
            e(f"s_waitcnt lgkmcnt({nr+1-k})")
            for t in q_scale(qt, 2 * lc + k): e(t)
        e("s_waitcnt lgkmcnt(0)\ns_nop 0")
        if i >= ib and (lc == 3 or not cfg.pipe):
            mf_pre(i)
            if i < 11: k_pre((lc + 1) & 3)
        if lc == 3 and qt < 2:
            e("s_nop 3")
            for t in max_seq(qt) + cinit(qt) + soft0(qt) + ["s_nop 1"] + [l_txt(qt, kt) for kt in range(cfg.n0)]: e(t)
    e(f"s_lshl_b32 s{sQL}, s{sW}, 2\ns_add_u32 s{sQL}, s{sQL}, {FLAGS}")
    pst(8)
    for g_ in range(G0, G0 + cfg.skipsoft):
        for q_ in range(3):
            for h_ in (0, 1): e(f"v_mov_b32_e32 v{P(q_, g_ >> 1) + 2 * (g_ & 1) + h_}, v{P(0, 0) + h_ + 2 * (g_ & 1)}")
    e("s_nop 5")
    for t in max_seq(2): e(t)
    wait_vm(("k", cfg.n0, 3)); e("s_barrier")
    for ks in range(8): e(rd_k(G0, ks))
    for t in cinit(2) + soft0(2, 2 * cfg.cdef): e(t)
    e("s_waitcnt lgkmcnt(0)")
    stamp(4)
    return vm, {n: vm[mark[("k", n, 3)] - 1] for n in kat}

def finish():
    if not cfg.pstamp: stamp(8)
    e(f"""
    v_mov_b32_e32 v{vT}, {FLAGS}
    ds_read_b128 v[0:3], v{vT}
    s_waitcnt lgkmcnt(0)
    v_or3_b32 v0, v0, v1, v2
    v_or_b32_e32 v0, v0, v3
    s_nop 0
    v_readfirstlane_b32 s3, v0
    s_andn2_b32 s3, s3, s{sRUN}
    s_cbranch_scc1 L_fallback
    """)
    e("L_done:")
    if cfg.stamps or cfg.diag >= 0:
        e("s_waitcnt vmcnt(0)"); stamp(9)
    if cfg.stamps:
        e(f"""
        s_mov_b32 s{SD}, s{sPTR+10}
        s_mov_b32 s{SD+1}, s{sPTR+11}
        s_mov_b32 s{SD+2}, 0x100000
        s_mov_b32 s{SD+3}, 0x20000
        s_lshl_b32 s3, s2, 2
        s_add_u32 s3, s3, s{sW}
        s_lshl_b32 s3, s3, 7
        v_mov_b32_e32 v0, s3
        s_getreg_b32 s{sSTT}, hwreg(HW_REG_XCC_ID)
        s_getreg_b32 s{sSTT+1}, hwreg(HW_REG_HW_ID)
        """)
        for i in range(22):
            e(f"v_mov_b32_e32 v1, s{sCY+i}\nbuffer_store_dword v1, v0, {sr(SD,4)}, 0 offen offset:{4*i}\ns_nop 1")
    if cfg.diag >= 0:
        a, b = (cfg.diag % 100) // 10, cfg.diag % 10
        base = sCY if cfg.diag >= 100 else sRT
        e(f"s_sub_u32 s3, s{base+b}, s{base+a}")
        if cfg.diag >= 100: e("s_mul_hi_u32 s3, s3, 0x19999999")
        if cfg.diagmul != 1: e(f"s_mul_i32 s3, s3, {cfg.diagmul}")
        if cfg.diagwg >= 0: e(f"s_cmp_eq_u32 s2, {cfg.diagwg}\ns_cselect_b32 s3, s3, 0")
        e(f"s_min_u32 s3, s3, 20000\ns_add_u32 s3, s3, {cfg.diagbase}\nL_spin:\ns_memrealtime {sr(sSTT,2)}\ns_waitcnt lgkmcnt(0)\ns_sub_u32 s{sT}, s{sSTT}, s{sRT}\ns_cmp_lt_u32 s{sT}, s3\ns_cbranch_scc1 L_spin")
    e("L_exit:\ns_endpgm\nL_fallback:")
    e(f"""
    s_mov_b32 s{sRUN}, -1
    s_lshl_b32 s3, s{sHEAD}, 18
    s_add_u32 s{SF}, s{sPTR+2}, s3
    s_addc_u32 s{SF+1}, s{sPTR+3}, 0
    s_mov_b32 s{SF+2}, {KHEAD}
    s_mov_b32 s{SF+3}, 0x20000
    v_mbcnt_lo_u32_b32 v8, -1, 0
    v_mbcnt_hi_u32_b32 v8, -1, v8
    v_and_b32_e32 v9, 15, v8
    v_lshrrev_b32_e32 v8, 4, v8
    v_lshlrev_b32_e32 v8, 4, v8
    v_lshl_add_u32 v8, v9, 9, v8
    v_mov_b32_e32 v4, 0xff800000
    v_mov_b32_e32 v5, 0xff800000
    v_mov_b32_e32 v6, 0xff800000
    s_mov_b32 s3, 0
    L_fb:
    """)
    for ks in range(8): e(f"buffer_load_dwordx4 {vr(16+4*ks,4)}, v8, {sr(SF,4)}, 0 offen offset:{64*ks}")
    e("v_add_u32_e32 v8, 0x2000, v8\ns_waitcnt vmcnt(0)")
    for qt in range(3):
        for ks in range(8): e(mfma(vr(48 + 4 * qt, 4), vr(16 + 4 * ks, 4), ar(Qf(qt, ks), 4), "0" if ks == 0 else vr(48 + 4 * qt, 4)))
    e("s_nop 7")
    for qt in range(3):
        b = 48 + 4 * qt
        e(f"v_max3_f32 v{4+qt}, v{4+qt}, v{b}, v{b+1}\nv_max3_f32 v{4+qt}, v{4+qt}, v{b+2}, v{b+3}")
    e("s_add_u32 s3, s3, 1\ns_cmp_lt_u32 s3, 32\ns_cbranch_scc1 L_fb")
    for qt in range(3):
        e(f"v_mov_b32_e32 v{vNM+qt}, 0x7f800000")
        for t in max_fin(qt, 4 + qt, 7): e(t)
    e("s_barrier\ns_branch L_start")
    for t in tailcode: e(t)
    e("L_last:\ns_endpgm")
    if cfg.touch and cfg.tsplit: e(".if (L_exit-L_pc-32640) < 0\n.error \"code touch range\"\n.endif")

HEAD = open("standalone__mha_softmax__near_ridge.s.ref").read().split("\n")[:9]
def main():
    ap = argparse.ArgumentParser()
    ap.add_argument("-o", default="standalone__mha_softmax__near_ridge.s")
    ap.add_argument("opts", nargs="*")
    a = ap.parse_args()
    for o in a.opts:
        k, v = o.split("=")
        assert hasattr(cfg, k), k
        setattr(cfg, k, v if isinstance(getattr(cfg, k), str) else type(getattr(cfg, k))(eval(v)))
    e(f"{KN}:")
    main_stream(*prologue())
    finish()
    txt = "\n".join(HEAD) + "\n; @launch grid=(256,1,1) block=(256,1,1) lds=163840\n"
    txt += f'.amdgcn_target "amdgcn-amd-amdhsa--gfx950"\n.text\n.globl {KN}\n' + (f'.p2align 12\n.fill {64*cfg.pad}, 4, 0xbf800000\n' if cfg.pad >= 0 else '') + f'.p2align 8\n.type {KN},@function\n'
    txt += "\n".join(l if l.endswith(":") or l.startswith(".") else "    " + l for l in out) + "\n"
    txt += f""".section .rodata,"a"
.p2align 6
.amdhsa_kernel {KN}
  .amdhsa_next_free_vgpr 512
  .amdhsa_next_free_sgpr 102
  .amdhsa_accum_offset 256
  .amdhsa_group_segment_fixed_size 0
  .amdhsa_kernarg_size 48
  .amdhsa_user_sgpr_count 2
  .amdhsa_user_sgpr_kernarg_segment_ptr 1
  .amdhsa_system_sgpr_workgroup_id_x 1
.end_amdhsa_kernel
"""
    open(a.o, "w").write(txt)
main()
```
